```python
import torch

def _softmax(x, axis=-1):
    return torch.softmax(x, dim=axis)
def _gelu(x):
    return torch.nn.functional.gelu(x, approximate="tanh")
def _silu(x):
    return torch.nn.functional.silu(x)
def _sigmoid(x):
    return torch.sigmoid(x)
def _layernorm(x, axis=-1, eps=1e-5):
    m = x.mean(dim=axis, keepdim=True)
    v = x.var(dim=axis, keepdim=True, unbiased=False)
    return (x - m) / torch.sqrt(v + eps)
def _scatter_add(tgt, idx, src, axis=0):
    return tgt.clone().index_add_(axis, idx, src)
def _segment_sum(src, seg, n):
    out = torch.zeros((n,) + src.shape[1:], dtype=src.dtype)
    return out.index_add_(0, seg, src)
def _pad(x, pw):
    flat = tuple(v for pair in reversed(pw) for v in pair)
    return torch.nn.functional.pad(x, flat)

kernel_name = 'gated_mix__linear_kernel_hedgehog__glu_gated_glu__prompt'

def setup_inputs():

    _w = (lambda a: (lambda t: t.to(torch.bfloat16) if t.is_floating_point() else t)(torch.as_tensor(a)))
    def _A_setup():
        B, S, D, H = 1, 2048, 512, 32
        Dh = D // H
        return {
            "x": _w((lambda *s: torch.randn(*s, dtype=torch.bfloat16) * 0.05)(B, S, D)),
            "wqkv": _w((lambda *s: torch.randn(*s, dtype=torch.bfloat16) * 0.8)(D, 3 * D)),
            "w_phi": _w((lambda *s: torch.randn(*s, dtype=torch.bfloat16) * 0.8)(H, Dh, Dh) * (Dh ** -0.5)),
            "wo": _w((lambda *s: torch.randn(*s, dtype=torch.bfloat16) * 0.1)(D, D)),
        }
    _A_in = _A_setup()

    def _B_setup():
        B, S, D, F = 1, 2048, 512, 1792
        return {
            "x": _w((lambda *s: torch.randn(*s, dtype=torch.bfloat16) * 0.05)(B, S, D)),
            "w_gate": _w((lambda *s: torch.randn(*s, dtype=torch.bfloat16) * 0.4)(D, F)),
            "w_up": _w((lambda *s: torch.randn(*s, dtype=torch.bfloat16) * 0.05)(D, F)),
            "w_down": _w((lambda *s: torch.randn(*s, dtype=torch.bfloat16) * 0.05)(F, D)),
        }
    _B_in = _B_setup()

    return {
        "A_x": _A_in["x"],
        "A_wqkv": _A_in["wqkv"],
        "A_w_phi": _A_in["w_phi"],
        "A_wo": _A_in["wo"],
        "B_x": _B_in["x"],
        "B_w_gate": _B_in["w_gate"],
        "B_w_up": _B_in["w_up"],
        "B_w_down": _B_in["w_down"],
        "gate_w": _w((lambda *s: torch.randn(*s, dtype=torch.bfloat16) * 0.05)(512) * 16.0),
    }

def reference(A_x, A_wqkv, A_w_phi, A_wo, B_x, B_w_gate, B_w_up, B_w_down, gate_w):
    def _A_ref(x, wqkv, w_phi, wo):
        B, S, D = x.shape
        H = 32; Dh = D // H
        qkv = (lambda x, *d: x.permute(*d))((x @ wqkv).reshape(B, S, 3, H, Dh), 2, 0, 3, 1, 4)
        q, k, v = qkv[0], qkv[1], qkv[2]
        pq = torch.einsum("bhsd,hdf->bhsf", q, w_phi)
        pk = torch.einsum("bhsd,hdf->bhsf", k, w_phi)
        phi_q = torch.concatenate([_softmax(pq, axis=-1), _softmax(-pq, axis=-1)], axis=-1)
        phi_k = torch.concatenate([_softmax(pk, axis=-1), _softmax(-pk, axis=-1)], axis=-1)
        kv = torch.einsum("bhsf,bhsd->bhfd", phi_k, v)
        z  = torch.einsum("bhsf->bhf", phi_k)
        num = torch.einsum("bhqf,bhfd->bhqd", phi_q, kv)
        den = torch.einsum("bhqf,bhf->bhq", phi_q, z)[..., None] + 1e-6
        o = num / den
        return (lambda x, *d: x.permute(*d))(o, 0, 2, 1, 3).reshape(B, S, D) @ wo

    def _B_ref(x, w_gate, w_up, w_down):
        g = torch.einsum("bsd,df->bsf", x, w_gate)
        u = torch.einsum("bsd,df->bsf", x, w_up)
        h = _sigmoid(g) * u
        return torch.einsum("bsf,fd->bsd", h, w_down)

    x = A_x
    g = _sigmoid((x * gate_w).sum(-1, keepdims=True))
    a = _A_ref(x, A_wqkv, A_w_phi, A_wo)
    b = _B_ref(x, B_w_gate, B_w_up, B_w_down)
    return g * a + (1 - g) * b
```

```python
import re


class VReg:
    def __init__(self, name, n=1, align=None, fixed=None, long=False):
        self.name, self.n = name, n
        self.align = align if align else (1 if n == 1 else 2 if n < 4 else 4)
        self.phys = fixed
        self.fixed = fixed is not None
        self.long = long
        self.bias = 0

    def __getitem__(self, i):
        if isinstance(i, slice):
            a = i.start or 0
            b = self.n if i.stop is None else i.stop
            assert 0 <= a < b <= self.n, (self.name, a, b)
            return Ref(self, a, b - a)
        assert 0 <= i < self.n, (self.name, i)
        return Ref(self, i, 1)

    def ref(self):
        return Ref(self, 0, self.n)


class Ref:
    def __init__(self, reg, off, cnt):
        self.reg, self.off, self.cnt = reg, off, cnt

    def __getitem__(self, i):
        if isinstance(i, slice):
            a = i.start or 0
            b = self.cnt if i.stop is None else i.stop
            assert 0 <= a < b <= self.cnt
            return Ref(self.reg, self.off + a, b - a)
        assert 0 <= i < self.cnt
        return Ref(self.reg, self.off + i, 1)

    def regs(self):
        b = self.reg.phys + self.off
        return range(b, b + self.cnt)

    def text(self):
        b = self.reg.phys + self.off
        if self.cnt == 1:
            return f"v{b}"
        assert b % 2 == 0, (self.reg.name, b)
        return f"v[{b}:{b + self.cnt - 1}]"


class Neg:
    def __init__(self, r):
        self.r = rf(r)


def rf(x):
    return x.ref() if isinstance(x, VReg) else x


def optext(x):
    if isinstance(x, Ref):
        return x.text()
    if isinstance(x, Neg):
        return "-" + x.r.text()
    if isinstance(x, float):
        return repr(x)
    if isinstance(x, int):
        return str(x) if -16 <= x <= 64 else hex(x & 0xFFFFFFFF)
    return str(x)


TRANS = ("v_exp_f32", "v_log_f32", "v_rcp_f32", "v_rsq_f32", "v_sqrt_f32")


class Inst:
    def __init__(self, op, ops=(), defs=(), uses=(), kind="salu", suffix="", tag=None, counted=True,
                 sdefs=(), suses=(), cost=1.0):
        self.op, self.ops, self.kind, self.suffix = op, list(ops), kind, suffix
        self.defs = [rf(d) for d in defs]
        self.uses = [rf(u) for u in uses]
        self.tag, self.counted = tag, counted
        self.sdefs, self.suses = set(sdefs), set(suses)
        self.cost = cost

    def text(self):
        if self.kind == "label":
            return self.op + ":"
        if self.kind == "comment":
            return "; " + self.op
        s = self.op
        if self.ops:
            s += " " + ", ".join(optext(o) for o in self.ops)
        if self.suffix:
            s += " " + self.suffix
        return "    " + s


def sregs(x):
    if not isinstance(x, str):
        return set()
    m = re.fullmatch(r"s\[(\d+):(\d+)\]", x)
    if m:
        return {f"s{i}" for i in range(int(m.group(1)), int(m.group(2)) + 1)}
    if re.fullmatch(r"s\d+", x):
        return {x}
    if x == "vcc":
        return {"vcc"}
    return set()


def vsrc(xs):
    out = []
    for x in xs:
        if isinstance(x, Neg):
            out.append(x.r)
        elif isinstance(x, (Ref, VReg)):
            out.append(rf(x))
    return out


def V(op, dst, *srcs, suffix="", rmw=False):
    srcs = [rf(s) for s in srcs]
    dst = rf(dst)
    base = op.replace("_e64", "").replace("_e32", "")
    kind = "trans" if base in TRANS else "valu"
    if "row_" in suffix or "quad_perm" in suffix:
        kind = "dpp"
    if base.startswith("v_dot2"):
        kind = "dot"
    uses = vsrc(srcs) + ([dst] if rmw or base in ("v_fmac_f32",) else [])
    su = set()
    for s in srcs:
        su |= sregs(s)
    return Inst(op, [dst] + srcs, [dst], uses, kind, suffix, suses=su, cost=2.0 if kind == "trans" else 1.0)


def VCMP(op, sdst, a, b):
    a, b = rf(a), rf(b)
    return Inst(op, [sdst, a, b], [], vsrc([a, b]), "valu", sdefs=sregs(sdst), suses=sregs(a) | sregs(b))


def RFL(sdst, src):
    src = rf(src)
    return Inst("v_readfirstlane_b32", [sdst, src], [], [src], "readlane", sdefs=sregs(sdst))


def RL(sdst, src, lane):
    src = rf(src)
    return Inst("v_readlane_b32", [sdst, src, lane], [], [src], "readlane", sdefs=sregs(sdst))


def SWAP32(a, b):
    a, b = rf(a), rf(b)
    return Inst("v_permlane32_swap_b32", [a, b], [a, b], [a, b], "permlane")


def MFMA(shape, d, a, b, c):
    d, a, b = rf(d), rf(a), rf(b)
    c = rf(c)
    op = {32: "v_mfma_f32_32x32x16_bf16", 16: "v_mfma_f32_16x16x32_bf16"}[shape]
    i = Inst(op, [d, a, b, c], [d], [a, b] + vsrc([c]), "mfma", cost=2.0)
    i.passes = 8 if shape == 32 else 4
    i.a, i.b, i.c, i.d = a, b, (c if isinstance(c, Ref) else None), d
    return i


def S(text, m0=False, cost=0.5):
    op, _, rest = text.partition(" ")
    i = Inst(op, [rest] if rest else [], kind="salu", cost=cost)
    i.m0def = m0 or rest.startswith("m0,")
    return i


def DSR(op, dst, addr, off, tag=None):
    assert 0 <= off < 65536, off
    dst, addr = rf(dst), rf(addr)
    return Inst(op, [dst, addr], [dst], [addr], "ds_read", f"offset:{off}" if off else "", tag=tag)


def DSW(op, addr, src, off, tag=None):
    assert 0 <= off < 65536, off
    src, addr = rf(src), rf(addr)
    return Inst(op, [addr, src], [], [addr, src], "ds_write", f"offset:{off}" if off else "", tag=tag)


def _bsuf(off, flags):
    assert 0 <= off < 4096, off
    return ("offen" + (f" offset:{off}" if off else "") + (" " + flags if flags else ""))


def DMA(voff, srd, soff, off=0, tag=None, flags=""):
    voff = rf(voff)
    i = Inst("buffer_load_dwordx4", [voff, srd, soff], [], [voff], "dma", _bsuf(off, flags) + " lds", tag=tag,
             suses=sregs(srd) | sregs(soff))
    return i


def BLOAD(op, dst, voff, srd, soff, off=0, flags="", tag=None, counted=True):
    dst, voff = rf(dst), rf(voff)
    return Inst(op, [dst, voff, srd, soff], [dst], [voff], "vload", _bsuf(off, flags), tag=tag, counted=counted,
                suses=sregs(srd) | sregs(soff))


def BSTORE(op, src, voff, srd, soff, off=0, flags="", tag=None, counted=True):
    src, voff = rf(src), rf(voff)
    i = Inst(op, [src, voff, srd, soff], [], [src, voff], "vstore", _bsuf(off, flags), tag=tag, counted=counted,
             suses=sregs(srd) | sregs(soff))
    i.data = src
    return i


def GLOAD(op, dst, voff, sbase, off=0, flags="", tag=None, counted=True):
    dst, voff = rf(dst), rf(voff)
    suf = ((f"offset:{off}" if off else "") + " " + flags).strip()
    return Inst(op, [dst, voff, sbase], [dst], [voff], "vload", suf, tag=tag, counted=counted, suses=sregs(sbase))


def GSTORE(op, voff, src, sbase, off=0, flags="", tag=None, counted=True):
    src, voff = rf(src), rf(voff)
    suf = ((f"offset:{off}" if off else "") + " " + flags).strip()
    i = Inst(op, [voff, src, sbase], [], [src, voff], "vstore", suf, tag=tag, counted=counted, suses=sregs(sbase))
    i.data = src
    return i


def BAR():
    return Inst("s_barrier", kind="barrier")


def WAITVM(*tags):
    i = Inst("waitvm", kind="pw_vm", cost=0.3)
    i.tags = set(tags)
    return i


def WAITLGKM():
    return Inst("waitlgkm", kind="pw_lgkm", cost=0.3)


def WAITALL():
    return Inst("waitall", kind="pw_all")


def LABEL(n):
    return Inst(n, kind="label", cost=0)


def COMMENT(n):
    return Inst(n, kind="comment", cost=0)


def KEEP(*refs):
    return Inst("keep", uses=[rf(r) for r in refs], kind="keep", cost=0)


def allocate(prog, limit=256, reserved=()):
    first, last = {}, {}
    for idx, ins in enumerate(prog):
        for r in ins.defs + ins.uses:
            o = r.reg
            if o not in first:
                first[o] = idx
                last[o] = [-1] * o.n
            for e in range(r.off, r.off + r.cnt):
                last[o][e] = idx
    busy = [-1] * limit
    for p in reserved:
        busy[p] = 1 << 30
    fixed = [o for o in first if o.fixed]
    for o in fixed:
        for e in range(o.n):
            busy[o.phys + e] = max(busy[o.phys + e], last[o][e])
    peak = 0
    for o in sorted((o for o in first if not o.fixed), key=lambda o: first[o]):
        st = first[o]
        life = max(last[o]) - st
        rng = range(0, limit - o.n + 1, o.align)
        if o.long or life > 600:
            rng = reversed(rng)
        for b in rng:
            if all(busy[b + e] < st for e in range(o.n)):
                break
        else:
            live = sum(1 for x in busy if x >= st)
            raise RuntimeError(f"out of VGPRs for {o.name} (n={o.n}) at inst {st}; live={live}")
        o.phys = b
        for e in range(o.n):
            busy[b + e] = max(last[o][e], st)
        peak = max(peak, sum(1 for x in busy if x >= st))
    return peak


def insert_waits(prog):
    out = []
    vm, lg = [], []

    def need(q, pred):
        p = -1
        for k, e in enumerate(q):
            if pred(e):
                p = k
        return p

    for ins in prog:
        touched = set()
        for r in ins.defs + ins.uses:
            touched.update(r.regs())
        if ins.kind == "keep":
            continue
        pv = need(vm, lambda e: e[1] & touched)
        pl = need(lg, lambda e: e[1] & touched)
        if ins.kind == "pw_vm":
            pv = need(vm, lambda e: e[0] in ins.tags)
        elif ins.kind == "pw_lgkm":
            pl = len(lg) - 1
        elif ins.kind == "pw_all":
            pv, pl = len(vm) - 1, len(lg) - 1
        parts = []
        if pv >= 0 or ins.kind == "pw_all":
            n = len(vm) - 1 - pv
            assert n <= 63
            parts.append(f"vmcnt({n})")
            del vm[:pv + 1]
        if pl >= 0 or ins.kind == "pw_all":
            n = min(len(lg) - 1 - pl, 15)
            parts.append(f"lgkmcnt({n})")
            del lg[:len(lg) - n]
        if parts:
            out.append(Inst("s_waitcnt", [" ".join(parts)], kind="wait"))
        if ins.kind.startswith("pw_"):
            continue
        out.append(ins)
        dregs = set()
        for r in ins.defs:
            dregs.update(r.regs())
        if ins.kind in ("dma", "vload", "vstore"):
            if ins.counted:
                vm.append((ins.tag, dregs))
                assert len(vm) <= 62, "too many outstanding vm ops"
            else:
                assert not dregs
        elif ins.kind in ("ds_read", "ds_write"):
            lg.append((ins.tag, dregs))
    return out


VALU_KINDS = ("valu", "trans", "dpp", "permlane", "dot", "readlane")


def _regs(refs):
    s = set()
    for r in refs:
        s.update(r.regs())
    return s


def required_gap(p, c):
    need = 0
    pd, pu = p._d, p._u
    cd, cu = c._d, c._u
    if p.kind in VALU_KINDS:
        if pd & cu:
            if c.kind == "mfma":
                need = max(need, 2)
            if c.kind in ("permlane", "dpp"):
                need = max(need, 2)
            if c.kind == "readlane":
                need = max(need, 1)
            if p.kind == "trans" and c.kind in VALU_KINDS and c.kind != "trans":
                need = max(need, 1)
        if p.kind == "dot" and (pd & (cu | cd)) and not (c.kind == "dot"):
            need = max(need, 3)
        if p.sdefs & c.suses:
            if c.kind in VALU_KINDS:
                need = max(need, 2)
            if c.kind in ("dma", "vload", "vstore"):
                need = max(need, 5)
        if p.sdefs and c.kind == "salu":
            txt = " ".join(str(o) for o in c.ops)
            for s in p.sdefs:
                if re.search(r"\b" + s + r"\b", txt):
                    need = max(need, 1)
    if p.kind == "mfma":
        big = 12 if p.passes == 8 else 8
        ovl = 10 if p.passes == 8 else 6
        war = 7 if p.passes == 8 else 3
        if c.kind == "mfma":
            ab = set(c.a.regs()) | set(c.b.regs())
            if pd & ab:
                need = max(need, big)
            if c.c is not None and pd & set(c.c.regs()):
                same = list(c.c.regs()) == list(p.d.regs()) and c.passes == p.passes
                if not same:
                    need = max(need, ovl)
            elif pd & cd and not (c.c is not None and list(c.c.regs()) == list(p.d.regs())):
                need = max(need, big)
        elif c.kind in VALU_KINDS:
            if pd & (cu | cd):
                need = max(need, big)
            if p.c is not None and set(p.c.regs()) & cd:
                need = max(need, war)
        elif c.kind in ("ds_read", "ds_write", "dma", "vload", "vstore"):
            if pd & (cu | cd):
                need = max(need, big)
            if p.c is not None and set(p.c.regs()) & cd:
                need = max(need, war)
    if p.kind == "vstore" and p.data.cnt >= 2:
        if set(p.data.regs()) & cd:
            need = max(need, 2)
    if p.kind == "salu" and getattr(p, "m0def", False) and c.kind == "dma":
        need = max(need, 1)
    return need


def insert_nops(prog):
    out = []
    for ins in prog:
        ins._d, ins._u = _regs(ins.defs), _regs(ins.uses)
        if ins.kind in ("label", "comment"):
            out.append(ins)
            continue
        dist, pad = 0, 0
        for p in reversed(out):
            if p.kind in ("label", "comment"):
                continue
            g = required_gap(p, ins)
            if g > dist:
                pad = max(pad, g - dist)
            dist += p.states if p.kind == "nop" else 1
            if dist >= 13:
                break
        if pad:
            n = Inst("s_nop", [pad - 1], kind="nop")
            n.states = pad
            n._d, n._u = set(), set()
            out.append(n)
        out.append(ins)
    return out


def finish(prog, limit=256, reserved=()):
    peak = allocate(prog, limit, reserved)
    prog = insert_waits(prog)
    prog = insert_nops(prog)
    return prog, peak
```

```python
import os, sys
sys.path.insert(0, os.path.dirname(os.path.abspath(__file__)))
from asmfw import *

NAME = "gated_mix__linear_kernel_hedgehog__glu_gated_glu__prompt"
OPT = dict(stamp=0, D=2, nslot=10, spin=1 << 22)
for a in sys.argv[2:]:
    k, v = a.split("=")
    OPT[k] = int(v)
D = OPT["D"]
SLOT = 16384

WS_H = 0
WS_Z = 0x900000
ZBLK = 9216
WS_G = 0x920000
WS_STAMP = 0x930000
WS_SIZE = 0xA00000

sX, sQKV, sPHI, sWO, sWG, sWU, sWD = "s[4:5]", "s[6:7]", "s[8:9]", "s[10:11]", "s[14:15]", "s[16:17]", "s[18:19]"
sGW, sOUTP, sDBG, sWS = "s[20:21]", "s[22:23]", "s[24:25]", "s[26:27]"
SX, SQ, SG, SU, SD, SO, SW, SOUT = ("s[28:31]", "s[32:35]", "s[36:39]", "s[40:43]", "s[44:47]", "s[48:51]",
                                    "s[52:55]", "s[56:59]")
s_w, s_r, s_c, s_j, s_rb, s_rb2, s_cb, s_cg = "s60", "s61", "s62", "s63", "s64", "s65", "s66", "s67"
s_w2048, s_u, s_h, s_R1, s_R3, s_R3h, s_L, s_nL = "s68", "s69", "s70", "s71", "s72", "s73", "s74", "s75"
s_so0, s_so1, s_side = "s76", "s77", "s78"
s_hst2, s_hst1, s_hld, s_tat, s_tld, s_f2sig, s_f2wait, s_f1 = "s79", "s80", "s81", "s82", "s83", "s84", "s85", "s86"
s_t0, s_t1, s_t2 = "s87", "s88", "s89"
s_mask = "s[90:91]"
s_spin, s_ph = "s92", "s93"
s_ts = "s[94:95]"


def srd_lo(s):
    return int(s[2:s.index(":")])


class Prog:
    def __init__(self, typ):
        self.typ = typ
        self.pro = []
        self.main = []
        self.first = {}
        self.side = {}
        self.prebar = {}
        self.tail = []
        self.slow = []
        self.v0 = VReg("v0", fixed=0)
        self.nstamp = 0
        self.vst = VReg("stamps", long=True) if OPT["stamp"] else None
        self.nlab = 0

    def label(self, n):
        self.nlab += 1
        return f"L{self.typ}_{n}_{self.nlab}"

    def stamp(self):
        if not OPT["stamp"]:
            return []
        k = self.nstamp
        self.nstamp += 1
        i = Inst("v_writelane_b32", [self.vst.ref(), "s94", k], [self.vst], [self.vst], "valu")
        return [WAITLGKM(), S(f"s_memrealtime {s_ts}"), S("s_waitcnt lgkmcnt(0)"), i]

    def place(self, groups, m0, m1):
        groups = [g if isinstance(g, list) else [g] for g in groups]
        tot = sum(sum(i.cost for i in g) for g in groups) or 1.0
        n = m1 - m0 + 1
        acc = 0.0
        for g in groups:
            m = m0 + min(n - 1, int(acc / tot * n))
            self.side.setdefault(m, []).append(g)
            acc += sum(i.cost for i in g)

    def lds(self, base, addr):
        fix = []
        if not (0 <= addr - base.bias < 65536):
            nb = addr & ~0xFFFF
            fix.append(V("v_add_u32", base, nb - base.bias, base))
            base.bias = nb
        return fix, addr - base.bias

    def trfrag(self, base, addr, step2):
        f = VReg("frag", 4)
        fix, imm = self.lds(base, addr)
        assert imm + step2 < 65536
        return f, fix + [DSR("ds_read_b64_tr_b16", f[0:2], base, imm), DSR("ds_read_b64_tr_b16", f[2:4], base, imm + step2)]

    def field(self, dst, fields, init=None):
        out = []
        t = VReg("ft")
        cur = init
        for lo, width, pos in fields:
            out.append(V("v_bfe_u32", t, self.lane, lo, width))
            if cur is None:
                out.append(V("v_lshlrev_b32", dst, pos, t))
            else:
                out.append(V("v_lshl_add_u32", dst, t, pos, cur))
            cur = dst
        return out

    def srd(self, s, ptr, shift, total, minus=0):
        a, p = srd_lo(s), srd_lo(ptr)
        o = []
        if shift is None:
            o += [S(f"s_mov_b32 s{a}, s{p}"), S(f"s_mov_b32 s{a+1}, s{p+1}"), S(f"s_mov_b32 s{a+2}, {total}")]
        else:
            o += [S(f"s_add_u32 s{a}, s{p}, {shift}"), S(f"s_addc_u32 s{a+1}, s{p+1}, 0"),
                  S(f"s_sub_u32 s{a+2}, {total + minus}, {shift}")]
            if minus:
                o += [S(f"s_sub_u32 s{a}, s{a}, {minus}"), S(f"s_subb_u32 s{a+1}, s{a+1}, 0")]
        o.append(S(f"s_mov_b32 s{a+3}, 0x20000"))
        return o

    def poll_cnt(self, soff, shift, want):
        vp = VReg("poll")
        issue = [BLOAD("buffer_load_dword", vp, self.vzero, SW, soff, 0, "sc1")]
        slow, back = self.label("slow"), self.label("back")
        chk = [RFL(s_t0, vp), S(f"s_bfe_u32 {s_t0}, {s_t0}, {hex((8 << 16) | shift)}"),
               S(f"s_cmp_eq_u32 {s_t0}, {want}"), S(f"s_cbranch_scc0 {slow}"), LABEL(back), KEEP(vp, self.vzero)]
        self.slow.append((slow, back, lambda: [
            f"buffer_load_dword {vp.ref().text()}, {self.vzero.ref().text()}, {SW}, {soff} offen sc1",
            "s_waitcnt vmcnt(0)", f"v_readfirstlane_b32 {s_t0}, {vp.ref().text()}", "s_nop 1",
            f"s_bfe_u32 {s_t0}, {s_t0}, {hex((8 << 16) | shift)}", f"s_cmp_eq_u32 {s_t0}, {want}"]))
        return issue, chk

    def poll_f0(self):
        vp, va = VReg("poll"), VReg("polla")
        issue = self.field(va, [(0, 3, 2)]) + [GLOAD("global_load_dword", vp, va, sDBG, 0, "sc1")]
        slow, back = self.label("slow"), self.label("back")
        chk = [VCMP("v_cmp_ne_u32", "vcc", 0, vp), S("s_cmp_eq_u64 vcc, -1"), S(f"s_cbranch_scc0 {slow}"),
               LABEL(back), KEEP(vp, va)]
        self.slow.append((slow, back, lambda: [
            f"global_load_dword {vp.ref().text()}, {va.ref().text()}, {sDBG} sc1", "s_waitcnt vmcnt(0)",
            f"v_cmp_ne_u32 vcc, 0, {vp.ref().text()}", "s_nop 1", "s_cmp_eq_u64 vcc, -1"]))
        return issue, chk

    def signal(self, soff, val):
        skip = self.label("nosig")
        t = VReg("sigv")
        a = BSTORE("buffer_atomic_add", t, self.vzero, SW, soff, counted=False)
        return [V("v_mov_b32", t, val), S(f"s_cmp_lg_u32 {s_w}, 0"), S(f"s_cbranch_scc1 {skip}"),
                S("s_mov_b64 exec, 1"), a, S("s_mov_b64 exec, -1"), LABEL(skip)]

    def dma_item(self, it, slot):
        kind, i = it
        tag = it
        o = [S(f"s_add_u32 m0, {s_w2048}, {slot * SLOT}")]
        if kind == "x":
            o += [S(f"s_mov_b32 {s_so0}, {128 * i}"), DMA(self.vx0, SX, s_so0, 0, tag), DMA(self.vx1, SX, s_so0, 1024, tag)]
        elif kind == "kv":
            o += [S(f"s_mov_b32 {s_so0}, {64 * i * 3072 + 1024}"), DMA(self.vkv, SQ, s_so0, 0, tag),
                  DMA(self.vkv, SQ, s_so0, 1024, tag)]
        elif kind == "q":
            o += [S(f"s_mov_b32 {s_so0}, {128 * i * 3072}"), S(f"s_mov_b32 {s_so1}, {(128 * i + 64) * 3072 - 1024}"),
                  DMA(self.vkv, SQ, s_so0, 0, tag), DMA(self.vkv, SQ, s_so1, 1024, tag)]
        elif kind in ("g0", "g1"):
            u = int(kind[1])
            o += [S(f"s_add_u32 {s_so0}, {s_u}, {64 * i * 3584 + 128 * u}"), DMA(self.vg, SG, s_so0, 0, tag),
                  DMA(self.vu, SU, s_so0, 1024, tag)]
        elif kind == "gh":
            o += [S(f"s_add_u32 {s_so0}, {s_h}, {128 * i * 3584}"), DMA(self.vgh, SG, s_so0, 0, tag),
                  DMA(self.vuh, SU, s_so0, 1024, tag)]
        elif kind == "w2":
            if i < 8:
                base, srd, rows = s_R1, SD, 64 * (i >> 2) + 16 * (i & 3)
            elif i < 12:
                base, srd, rows = s_R3, SD, 16 * (i - 8)
            elif i < 14:
                base, srd, rows = s_R3h, SD, 16 * (i - 12)
            else:
                base, srd, rows = s_R3, SO, 16 * (i - 14)
            o += [S(f"s_add_u32 {s_so0}, {base}, {rows * 1024}"), DMA(self.vw2a, srd, s_so0, 0, tag),
                  DMA(self.vw2b, srd, s_so0, 1024, tag)]
        return o

    def gu_epi(self, acc, sbase, ch, tag):
        g = []
        for k in range(8):
            g.append(V("v_mul_f32", acc[k], s_nL, acc[k]))
        for k in range(8):
            g.append(V("v_exp_f32", acc[k], acc[k]))
        for k in range(8):
            g.append(V("v_add_f32", acc[k], 1.0, acc[k]))
        for k in range(8):
            g.append(V("v_rcp_f32", acc[k], acc[k]))
        for k in range(8):
            g.append(V("v_mul_f32", acc[8 + k], acc[k], acc[8 + k]))
        for k in range(4):
            g.append(V("v_cvt_pk_bf16_f32", acc[k], acc[8 + 2 * k], acc[9 + 2 * k]))
        g.append([S(f"s_add_u32 {s_side}, {sbase}, {ch * 8192}"),
                  BSTORE("buffer_store_dwordx4", acc[0:4], self.vl16, SW, s_side, 0, "sc1", tag)])
        return g

    def phi_epi(self, acc):
        g = []
        kb, P = VReg("kb", 8), VReg("P", 16)
        for k in range(8):
            g.append(V("v_cvt_pk_bf16_f32", kb[k], acc[2 * k], acc[2 * k + 1]))
        g.append(MFMA(32, P, self.A0, kb[0:4], 0))
        g.append(MFMA(32, P, self.A1, kb[4:8], P))
        n_head = len(g)
        mx, mn = VReg("mx"), VReg("mn")
        g.append(V("v_max3_f32", mx, P[0], P[1], P[2]))
        g.append(V("v_min3_f32", mn, P[0], P[1], P[2]))
        for k in range(3, 15, 2):
            g.append(V("v_max3_f32", mx, mx, P[k], P[k + 1]))
            g.append(V("v_min3_f32", mn, mn, P[k], P[k + 1]))
        g.append(V("v_max_f32", mx, mx, P[15]))
        g.append(V("v_min_f32", mn, mn, P[15]))
        g.append(V("v_mul_f32", mx, s_nL, mx))
        g.append(V("v_mul_f32", mn, s_L, mn))
        for k in range(16):
            g.append(V("v_fma_f32", acc[k], P[k], s_L, mx))
            g.append(V("v_fma_f32", P[k], P[k], s_nL, mn))
            if k:
                g.append(V("v_exp_f32", acc[k - 1], acc[k - 1]))
                g.append(V("v_exp_f32", P[k - 1], P[k - 1]))
        g.append(V("v_exp_f32", acc[15], acc[15]))
        g.append(V("v_exp_f32", P[15], P[15]))
        sp, sn = VReg("sp"), VReg("sn")
        g.append(V("v_add_f32", sp, acc[0], acc[1]))
        g.append(V("v_add_f32", sn, P[0], P[1]))
        for k in range(2, 16):
            g.append(V("v_add_f32", sp, sp, acc[k]))
            g.append(V("v_add_f32", sn, sn, P[k]))
        g.append(V("v_rcp_f32", sp, sp))
        g.append(V("v_rcp_f32", sn, sn))
        for k in range(8):
            g.append(V("v_mul_f32", acc[2 * k], sp, acc[2 * k]))
            g.append(V("v_mul_f32", acc[2 * k + 1], sp, acc[2 * k + 1]))
            g.append(V("v_cvt_pk_bf16_f32", acc[k], acc[2 * k], acc[2 * k + 1]))
        for k in range(8):
            g.append(V("v_mul_f32", P[2 * k], sn, P[2 * k]))
            g.append(V("v_mul_f32", P[2 * k + 1], sn, P[2 * k + 1]))
            g.append(V("v_cvt_pk_bf16_f32", acc[8 + k], P[2 * k], P[2 * k + 1]))
        return g, n_head

    def build(self):
        A = self.typ == "A"
        P = self.pro
        self.lane = lane = VReg("lane", long=True)
        t = VReg("t")
        P += [V("v_lshrrev_b32", t, 6, self.v0), V("v_and_b32", lane, 63, self.v0), RFL(s_w, t)]
        if OPT["stamp"]:
            P += [V("v_mov_b32", self.vst, 0)]
        self.vx0, self.vx1 = VReg("vx0"), VReg("vx1")
        q, p, q1 = VReg("q"), VReg("p"), VReg("q1")
        P += [V("v_lshrrev_b32", q, 3, lane), V("v_and_b32", p, 7, lane), V("v_lshrrev_b32", q1, 4, lane),
              V("v_xor_b32", t, p, q1), V("v_lshlrev_b32", t, 4, t), V("v_lshl_add_u32", self.vx0, q, 10, t),
              V("v_xor_b32", self.vx1, 64, self.vx0), V("v_add_u32", self.vx1, 7168, self.vx1),
              V("v_and_b32", q1, 1, q1)]
        self.vg, self.vu = VReg("vg", long=True), VReg("vu", long=True)
        t2 = VReg("t2")
        P += [S(f"s_movk_i32 {s_t0}, 3584"), V("v_lshlrev_b32", t, 1, q1), V("v_xor_b32", t, p, t),
              V("v_lshlrev_b32", t, 4, t), V("v_mad_u32_u24", self.vg, q, s_t0, t), V("v_xor_b32", self.vu, 64, self.vg)]
        self.vw2a, self.vw2b = VReg("vw2a", long=True), VReg("vw2b", long=True)
        P += [V("v_lshlrev_b32", t2, 2, q1), V("v_xor_b32", t2, p, t2), V("v_lshlrev_b32", t2, 4, t2),
              V("v_lshl_add_u32", self.vw2a, q, 10, t2), V("v_add_u32", self.vw2b, 7168, self.vw2a)]
        if A:
            self.vkv = VReg("vkv", long=True)
            P += [S(f"s_movk_i32 {s_t1}, 3072"), V("v_mad_u32_u24", self.vkv, q, s_t1, t2)]
        P += [S(f"s_and_b32 {s_r}, {s_w}, 3"), S(f"s_lshr_b32 {s_c}, {s_w}, 2"), S(f"s_lshl_b32 {s_w2048}, {s_w}, 11"),
              S(f"s_mul_i32 {s_t2}, {s_w}, {8 * 3584}")]
        P += [S("s_waitcnt lgkmcnt(0)")]
        P += [S(f"s_lshl_b32 {s_t0}, {s_rb}, 17"), S(f"s_lshl_b32 {s_t1}, {s_w}, 14"), S(f"s_add_u32 {s_t0}, {s_t0}, {s_t1}")]
        P += self.srd(SX, sX, s_t0, 2097152)
        if A:
            P += [S(f"s_mul_i32 {s_t0}, {s_w}, {8 * 3072}"), S(f"s_lshl_b32 {s_t1}, {s_j}, 7"),
                  S(f"s_add_u32 {s_t0}, {s_t0}, {s_t1}")]
            P += self.srd(SQ, sQKV, s_t0, 1572864)
            gsetup = [S(f"s_lshl_b32 {s_t1}, {s_j}, 7"), S(f"s_add_u32 {s_t0}, {s_t2}, {s_t1}"), S(f"s_mov_b32 {s_u}, 0")]
        else:
            gsetup = [S(f"s_lshr_b32 {s_t1}, {s_j}, 1"), S(f"s_mul_i32 {s_t1}, {s_t1}, 640"),
                      S(f"s_add_u32 {s_t0}, {s_t2}, {s_t1}"), S(f"s_add_u32 {s_t0}, {s_t0}, 1024"),
                      S(f"s_and_b32 {s_t1}, {s_j}, 1"), S(f"s_mul_i32 {s_u}, {s_t1}, 384"),
                      S(f"s_lshl_b32 {s_t1}, {s_t1}, 6"), S(f"s_add_u32 {s_h}, {s_t2}, {s_t1}"),
                      S(f"s_add_u32 {s_h}, {s_h}, 256")]
        gsetup += self.srd(SG, sWG, s_t0, 1835008) + self.srd(SU, sWU, s_t0, 1835008, minus=1024)
        if not A:
            P += gsetup

        steps = []
        for i in range(8):
            steps.append([("x", i), ("kv" if A else "g0", i)])
        if A:
            steps += [[("q", i)] for i in range(4)] + [[("g0", i)] for i in range(8)]
        else:
            steps += [[("g1", i)] for i in range(8)] + [[("gh", i)] for i in range(4)]
        steps += [[("w2", i)] for i in range(18)]
        items = [it for s in steps for it in s]
        free = list(range(OPT["nslot"]))
        slot_of = {}
        nxt = 0
        issue_at = {}
        reserve_at = {6: 1, 7: 2} if A else {}
        release_at = OPT.get("xrel", 12)
        xslots = []
        for tstep in range(-1, len(steps)):
            if tstep >= 0:
                free += [slot_of[it] for it in steps[tstep]]
            for _ in range(reserve_at.get(tstep, 0)):
                xslots.append(free.pop())
            if A and tstep == release_at:
                free += xslots
            lst = []
            cap = 99 if tstep < 0 else 2
            while free and nxt < len(items) and len(lst) < cap:
                s = free.pop(0)
                slot_of[items[nxt]] = s
                lst.append(items[nxt])
                nxt += 1
            issue_at[tstep] = lst
        self.steps, self.slot_of, self.issue_at = steps, slot_of, issue_at

        pre = issue_at[-1]
        P += self.dma_item(pre[0], slot_of[pre[0]]) + self.dma_item(pre[1], slot_of[pre[1]])
        P += self.srd(SW, sWS, None, WS_SIZE)
        self.vl16 = VReg("vl16", long=True)
        self.vzero = VReg("vzero", long=True)
        P += [V("v_lshlrev_b32", self.vl16, 4, lane), V("v_mov_b32", self.vzero, 0)]
        if not A:
            z4 = VReg("z4", 4)
            skip = self.label("nozero")
            P += [V("v_mov_b32", z4[k], 0) for k in range(4)]
            P += [S(f"s_mul_i32 {s_t0}, {s_j}, {ZBLK}"), S(f"s_add_u32 {s_t0}, {s_t0}, {WS_Z}"),
                  S(f"s_lshl_b32 {s_t1}, {s_w}, 10"), S(f"s_add_u32 {s_t1}, {s_t1}, {s_t0}"),
                  S(f"s_add_u32 {s_t0}, {s_t0}, 8192"),
                  S(f"s_cmp_lg_u32 {s_rb}, 0"), S(f"s_cbranch_scc1 {skip}"),
                  BSTORE("buffer_store_dwordx4", z4, self.vl16, SW, s_t1, 0, "sc1", counted=False),
                  BSTORE("buffer_store_dwordx4", z4, self.vl16, SW, s_t0, 0, "sc1", counted=False), LABEL(skip)]
        for it in pre[2:4]:
            P += self.dma_item(it, slot_of[it])
        gx, gw, ga = VReg("gx", 4), VReg("gw", 4), VReg("ga")
        P += [S(f"s_lshl_b32 {s_t0}, {s_rb}, 7"), S(f"s_lshl_b32 {s_t1}, {s_cg}, 3"), S(f"s_add_u32 {s_t0}, {s_t0}, {s_t1}"),
              S(f"s_add_u32 {s_t0}, {s_t0}, {s_w}"), S(f"s_lshl_b32 {s_t1}, {s_t0}, 10"),
              V("v_add_u32", ga, s_t1, self.vl16),
              GLOAD("global_load_dwordx4", gx, ga, sX), GLOAD("global_load_dwordx4", gw, self.vl16, sGW),
              S(f"s_lshl_b32 {s_ph}, {s_t0}, 2"), S(f"s_add_u32 {s_ph}, {s_ph}, {WS_G}")]
        if A:
            wr = [VReg("wr") for _ in range(8)]
            wa = VReg("wa")
            P += [S(f"s_lshl_b32 {s_t0}, {s_j}, 2"), S(f"s_lshl_b32 {s_t1}, {s_c}, 1"), S(f"s_add_u32 {s_t0}, {s_t0}, {s_t1}"),
                  S(f"s_lshl_b32 {s_t0}, {s_t0}, 9")]
            P += self.field(wa, [(2, 1, 9), (3, 2, 3), (0, 2, 1), (5, 1, 7)], init=s_t0)
            for k in range(8):
                P.append(GLOAD("global_load_ushort", wr[k], wa, sPHI, 256 * (k >> 2) + 32 * (k & 3)))
        for it in pre[4:]:
            P += self.dma_item(it, slot_of[it])
        if A:
            P += gsetup
        P += [S(f"s_mov_b32 {s_L}, 0x3fb8aa3b"), S(f"s_mov_b32 {s_nL}, 0xbfb8aa3b")]
        P += [S(f"s_lshl_b32 {s_t0}, {s_cb}, 7")] + self.srd(SD, sWD, s_t0, 1835008) + self.srd(SO, sWO, s_t0, 524288)
        P += [S(f"s_lshl_b32 {s_t1}, {s_rb2}, 16"), S(f"s_add_u32 {s_t0}, {s_t0}, {s_t1}")] + self.srd(SOUT, sOUTP, s_t0, 2097152)
        P += [S(f"s_lshr_b32 {s_t0}, {s_w}, 1"), S(f"s_mul_i32 {s_t0}, {s_t0}, 320"), S(f"s_and_b32 {s_t1}, {s_w}, 1"),
              S(f"s_mul_i32 {s_R1}, {s_t1}, 192"), S(f"s_add_u32 {s_R1}, {s_R1}, {s_t0}"), S(f"s_add_u32 {s_R1}, {s_R1}, 512"),
              S(f"s_lshl_b32 {s_R1}, {s_R1}, 10"),
              S(f"s_lshl_b32 {s_R3h}, {s_t1}, 5"), S(f"s_add_u32 {s_R3h}, {s_R3h}, {s_t0}"), S(f"s_add_u32 {s_R3h}, {s_R3h}, 640"),
              S(f"s_lshl_b32 {s_R3h}, {s_R3h}, 10"), S(f"s_lshl_b32 {s_R3}, {s_w}, 16")]
        P += [S(f"s_lshl_b32 {s_t0}, {s_rb}, 2"), S(f"s_add_u32 {s_t0}, {s_t0}, {s_r}"), S(f"s_mul_i32 {s_t0}, {s_t0}, 144"),
              S(f"s_add_u32 {s_t0}, {s_t0}, {s_j}"), S(f"s_lshl_b32 {s_t0}, {s_t0}, 10"),
              S(f"s_lshl_b32 {s_t1}, {s_c}, 13"), S(f"s_add_u32 {s_hst1}, {s_t0}, {s_t1}"),
              S(f"s_add_u32 {s_hst2}, {s_hst1}, {s_t1}"),
              S(f"s_lshl_b32 {s_t0}, {s_rb2}, 1"), S(f"s_add_u32 {s_t0}, {s_t0}, {s_c}"), S(f"s_mul_i32 {s_t0}, {s_t0}, 144"),
              S(f"s_lshl_b32 {s_t1}, {s_r}, 1"), S(f"s_add_u32 {s_t0}, {s_t0}, {s_t1}"), S(f"s_lshl_b32 {s_hld}, {s_t0}, 10")]
        def f2off(dst, rbreg):
            return [S(f"s_lshr_b32 {s_t0}, {rbreg}, 1"), S(f"s_mul_i32 {s_t0}, {s_t0}, {ZBLK}"),
                    S(f"s_and_b32 {s_t1}, {rbreg}, 1"), S(f"s_lshl_b32 {s_t1}, {s_t1}, 7"),
                    S(f"s_add_u32 {s_t0}, {s_t0}, {s_t1}"), S(f"s_add_u32 {dst}, {s_t0}, {WS_Z + 8832}")]
        P += f2off(s_f2sig, s_rb) + [S(f"s_lshr_b32 {s_t2}, {s_rb2}, 1")] + f2off(s_f2wait, s_t2)
        if A:
            P += [S(f"s_mul_i32 {s_t0}, {s_j}, {ZBLK}"), S(f"s_add_u32 {s_t0}, {s_t0}, {WS_Z}"),
                  S(f"s_add_u32 {s_f1}, {s_t0}, 8704"),
                  S(f"s_mul_i32 {s_t1}, {s_r}, 2176"), S(f"s_add_u32 {s_tat}, {s_t0}, {s_t1}"),
                  S(f"s_lshl_b32 {s_t1}, {s_c}, 6"), S(f"s_add_u32 {s_tat}, {s_tat}, {s_t1}"),
                  S(f"s_mul_i32 {s_t1}, {s_c}, 4352"), S(f"s_add_u32 {s_tld}, {s_t0}, {s_t1}")]
        bx = [VReg(f"bx{i}") for i in range(4)]
        P += [S(f"s_lshl_b32 {s_t0}, {s_r}, 12")] + self.field(bx[0], [(0, 5, 7)], init=s_t0)
        P += [V("v_bfe_u32", t, lane, 1, 3), V("v_lshrrev_b32", t2, 5, lane), V("v_xor_b32", t, t, t2),
              V("v_lshl_add_u32", bx[0], t, 4, bx[0])]
        P += [V("v_xor_b32", bx[i], 32 * i, bx[0]) for i in range(1, 4)]
        bgu = [VReg("bgu0", long=True), VReg("bgu1", long=True)]
        gu_base = self.field(bgu[0], [(5, 1, 11), (4, 1, 10), (2, 2, 7), (0, 2, 3), (3, 2, 5)])
        gu_base += [S(f"s_lshl_b32 {s_t0}, {s_c}, 6"), V("v_xor_b32", bgu[0], s_t0, bgu[0]), V("v_xor_b32", bgu[1], 32, bgu[0])]
        if A:
            bkv = VReg("bkv")
            P += self.field(bkv, [(5, 1, 11), (2, 2, 7), (3, 1, 6), (4, 1, 5), (0, 2, 3)])
            P += [S(f"s_lshl_b32 {s_t0}, {s_c}, 6"), V("v_xor_b32", bkv, s_t0, bkv)]
        else:
            P += gu_base
        P += self.stamp()

        X = [VReg(f"X{k}", 4, long=True) for k in range(32)]
        M = self.main

        def add_slot(reads, mf):
            M.append((reads, mf))

        accs = {}
        bgh = VReg("bgh")
        bw2 = [VReg("bw20"), VReg("bw21")]
        Hf = {(ch, e): VReg(f"H{ch}_{e}", 4) for ch in range(18) for e in range(2)}
        accH = [VReg("accH0", 16), VReg("accH1", 16)]
        accO = [VReg("accO0", 16), VReg("accO1", 16)]
        for tstep, its in enumerate(steps):
            self.first[tstep] = len(M)
            kind, i = its[-1]
            sb = slot_of[its[-1]] * SLOT
            if kind in ("kv", "g0", "g1"):
                if i == 0:
                    accs[kind] = [VReg(kind + "a0", 16), VReg(kind + "a1", 16)]
                for ks in range(4):
                    xr = []
                    k = 4 * i + ks
                    if tstep < 8:
                        fix, imm = self.lds(bx[ks], slot_of[its[0]] * SLOT)
                        xr = fix + [DSR("ds_read_b128", X[k], bx[ks], imm)]
                    for tt in range(2):
                        if kind == "kv":
                            f, rd = self.trfrag(bkv, sb + ks * 4096 + tt * 1024, 512)
                        else:
                            f, rd = self.trfrag(bgu[tt], sb + ks * 4096, 512)
                        a = accs[kind][tt]
                        add_slot((xr if tt == 0 else []) + rd, MFMA(32, a, f, X[k], a if k else 0))
            elif kind == "q":
                if i == 0:
                    accs["q"] = VReg("qa", 16)
                for ks in range(8):
                    k = 8 * i + ks
                    f, rd = self.trfrag(bkv, sb + (ks & 3) * 4096 + (ks >> 2) * 1024, 512)
                    add_slot(rd, MFMA(32, accs["q"], f, X[k], accs["q"] if k else 0))
            elif kind == "gh":
                if i == 0:
                    accs["gh"] = VReg("gha", 16)
                for ks in range(8):
                    k = 8 * i + ks
                    f, rd = self.trfrag(bgh, sb + ks * 2048, 256)
                    add_slot(rd, MFMA(32, accs["gh"], f, X[k], accs["gh"] if k else 0))
            else:
                for e in range(2):
                    for nt in range(2):
                        f, rd = self.trfrag(bw2[nt], sb + e * 2048, 1024)
                        a = (accH if i < 14 else accO)[nt]
                        fresh = e == 0 and i in (0, 14)
                        add_slot(rd, MFMA(32, a, f, Hf[(i, e)], 0 if fresh else a))
        self.first[len(steps)] = len(M)
        F = self.first

        def bar(tstep):
            return F[tstep + 1] - D

        gs = VReg("gs")
        g = [V("v_mov_b32", gs, 0)]
        g += [V("v_dot2_f32_bf16", gs, gx[k], gw[k], gs) for k in range(4)]
        for sfx in ("row_shr:1", "row_shr:2", "row_shr:4", "row_shr:8"):
            g.append(V("v_add_f32", gs, gs, gs, suffix=sfx + " row_mask:0xf bank_mask:0xf bound_ctrl:0"))
        g.append(V("v_add_f32", gs, gs, gs, suffix="row_bcast:15 row_mask:0xa bank_mask:0xf", rmw=True))
        g.append(V("v_add_f32", gs, gs, gs, suffix="row_bcast:31 row_mask:0xc bank_mask:0xf", rmw=True))
        g.append([RL(s_side, gs, 63), V("v_mov_b32", gs, s_side)])
        g += [V("v_mul_f32", gs, s_nL, gs), V("v_exp_f32", gs, gs), V("v_add_f32", gs, 1.0, gs), V("v_rcp_f32", gs, gs),
              BSTORE("buffer_store_dword", gs, self.vzero, SW, s_ph, 0, "sc1", "gate")]
        self.place(g, F[2], F[3] - 1)

        def hload(ch):
            return [S(f"s_add_u32 {s_side}, {s_hld}, {ch * 8192}"),
                    BLOAD("buffer_load_dwordx4", Hf[(ch, 0)], self.vl16, SW, s_side, 0, "sc1"),
                    BLOAD("buffer_load_dwordx4", Hf[(ch, 1)], self.vl16, SW, s_side, 1024, "sc1")]

        w2base = self.field(bw2[0], [(5, 1, 9), (2, 2, 7), (3, 1, 6), (4, 1, 5), (0, 2, 3)])
        w2base = [w2base + [S(f"s_lshl_b32 {s_side}, {s_r}, 12"), V("v_add_u32", bw2[0], s_side, bw2[0]),
                            V("v_xor_b32", bw2[1], 64, bw2[0])]]
        P2 = 20
        if A:
            self.A0, self.A1 = VReg("A0", 4, long=True), VReg("A1", 4, long=True)
            g = [V("v_lshl_or_b32", wr[2 * k], wr[2 * k + 1], 16, wr[2 * k]) for k in range(4)]
            tm = VReg("tm")
            g.append([V("v_and_b32", tm, 4, lane), VCMP("v_cmp_eq_u32", s_mask, 0, tm)])
            g += [V("v_cndmask_b32", self.A0[k], 0, wr[2 * k], s_mask) for k in range(4)]
            g += [V("v_cndmask_b32", self.A1[k], wr[2 * k], 0, s_mask) for k in range(4)]
            self.place(g, F[3], F[4] - 1)
            PH0, PH1, VB = xslots[0] * SLOT, xslots[1] * SLOT, xslots[2] * SLOT
            kacc, vacc = accs["kv"]
            pk, nh = self.phi_epi(kacc)
            va = VReg("va")
            vg_ = [[S(f"s_lshl_b32 {s_side}, {s_r}, 12"), S(f"s_add_u32 {s_side}, {s_side}, {VB}")]
                   + self.field(va, [(0, 5, 7), (3, 1, 6), (1, 1, 5), (2, 1, 4), (0, 1, 3)], init=s_side)]
            tv = VReg("tv")
            vg_.append([V("v_lshrrev_b32", tv, 5, lane), V("v_lshlrev_b32", tv, 3, tv), V("v_xor_b32", va, tv, va),
                        S(f"s_lshl_b32 {s_side}, {s_c}, 6"), V("v_xor_b32", va, s_side, va)])
            for qq in range(4):
                vg_ += [V("v_cvt_pk_bf16_f32", vacc[4 * qq], vacc[4 * qq], vacc[4 * qq + 1]),
                        V("v_cvt_pk_bf16_f32", vacc[4 * qq + 1], vacc[4 * qq + 2], vacc[4 * qq + 3]),
                        DSW("ds_write_b64", va, vacc[4 * qq:4 * qq + 2], 0)]
                if qq < 3:
                    vg_.append(V("v_xor_b32", va, 16 * (qq ^ (qq + 1)), va))
            pa = VReg("pa")
            pw = [[S(f"s_mov_b32 {s_side}, {(PH1 - 16384) & 0xffffffff}"), S(f"s_cmp_lt_u32 {s_r}, 2"), S(f"s_cselect_b32 {s_side}, {PH0}, {s_side}"),
                   S(f"s_lshl_b32 {s_t2}, {s_r}, 13"), S(f"s_add_u32 {s_side}, {s_side}, {s_t2}")]
                  + self.field(pa, [(0, 5, 8), (3, 1, 7), (1, 1, 6), (0, 1, 5), (2, 1, 4)], init=s_side)]
            tp = VReg("tp")
            pw.append([V("v_lshrrev_b32", tp, 5, lane), V("v_lshlrev_b32", tp, 6, tp), V("v_xor_b32", pa, tp, pa),
                       S(f"s_lshl_b32 {s_side}, {s_c}, 7"), V("v_xor_b32", pa, s_side, pa)])
            for qq in range(4):
                pw.append(DSW("ds_write_b128", pa, kacc[4 * qq:4 * qq + 4], 0))
                if qq < 3:
                    pw.append(V("v_xor_b32", pa, 16 * (qq ^ (qq + 1)), pa))
            e0, e1 = OPT.get("kve0", 8), OPT.get("kve1", 10)
            self.place(pk[:nh] + vg_ + pk[nh:] + pw, F[e0], bar(e1) - 1)
            f0i, f0c = self.poll_f0()
            self.place([f0i], F[e1], F[e1])
            r1, r2, r3, r4 = VReg("rp1"), VReg("rp2"), VReg("rv1"), VReg("rv2")
            ta = VReg("ta")
            kv = [self.field(r1, [(2, 2, 8), (4, 2, 11), (4, 1, 7), (3, 1, 6), (2, 1, 5), (0, 1, 3)])
                  + [V("v_bfe_u32", ta, lane, 1, 1), V("v_lshlrev_b32", ta, 4, ta), V("v_xor_b32", r1, ta, r1),
                     S(f"s_lshl_b32 {s_side}, {s_r}, 6"), S(f"s_lshl_b32 {s_t2}, {s_c}, 5"),
                     S(f"s_add_u32 {s_side}, {s_side}, {s_t2}"), V("v_xor_b32", r1, s_side, r1), V("v_xor_b32", r2, 16, r1)]]
            kv.append(self.field(r3, [(2, 2, 7), (4, 2, 10), (4, 1, 6), (3, 1, 5), (2, 1, 3)])
                      + [V("v_and_b32", ta, 3, lane), V("v_lshlrev_b32", ta, 3, ta), V("v_xor_b32", r3, ta, r3),
                         S(f"s_lshl_b32 {s_side}, {s_r}, 5"), V("v_xor_b32", r3, s_side, r3), V("v_xor_b32", r4, 16, r3)])
            ones = VReg("ones", 4)
            kv += [V("v_mov_b32", ones[k], 0x3F803F80) for k in range(4)]
            D1, D2 = VReg("D1", 4), VReg("D2", 4)
            fr = []
            for m in range(4):
                fp, fv = VReg("fp", 4), VReg("fv", 4)
                pb = (PH0 if m < 2 else PH1) + (m & 1) * 8192
                for reg, dst, addr in ((r1, fp[0:2], pb), (r2, fp[2:4], pb + 1024), (r3, fv[0:2], VB + m * 4096),
                                       (r4, fv[2:4], VB + m * 4096 + 512)):
                    fix, imm = self.lds(reg, addr)
                    kv.append(fix + [DSR("ds_read_b64_tr_b16", dst, reg, imm)])
                fr.append((fp, fv))
                if m:
                    kv += [MFMA(16, D1, fr[m - 1][1], fr[m - 1][0], D1 if m > 1 else 0),
                           MFMA(16, D2, ones, fr[m - 1][0], D2 if m > 1 else 0)]
            kv += [MFMA(16, D1, fr[3][1], fr[3][0], D1), MFMA(16, D2, ones, fr[3][0], D2)]
            aa = VReg("aa")
            kv.append(self.field(aa, [(4, 2, 9), (0, 4, 2)]))
            kv.append(f0c)
            kv += [BSTORE("buffer_atomic_add_f32", D1[k], aa, SW, s_tat, 128 * k, "", "kvat") for k in range(4)]
            kv.append([S("s_mov_b64 exec, 0xffff"), BSTORE("buffer_atomic_add_f32", D2[0], aa, SW, s_tat, 2048, "", "kvat"),
                       S("s_mov_b64 exec, -1")])
            assert release_at >= e1 + 1
            self.place(kv, bar(e1), bar(release_at) - 1)
            self.place([gu_base], F[11], F[11])
            tf1 = OPT.get("f1sig", 14)
            self.prebar.setdefault(tf1, []).append("kvat")
            self.place([self.signal(s_f1, 1)], bar(tf1), bar(tf1))
            qacc = accs["q"]
            pq, nh = self.phi_epi(qacc)
            for e in range(2):
                for k in range(4):
                    pq.append(SWAP32(qacc[8 * e + k], qacc[8 * e + 4 + k]))
            self.place(pq, F[13], F[18] - 1)
            gu = self.gu_epi(accs["g0"][0], s_hst2, 8, "S3") + self.gu_epi(accs["g0"][1], s_hst2, 9, "S3")
            self.place(gu, F[P2], F[P2 + 2] - 1)
            f1i, f1c = self.poll_cnt(s_f1, 0, 16)
            self.place([f1i], F[P2 + 1], F[P2 + 1])
            tva = VReg("tva")
            og = [f1c, [V("v_and_b32", tva, 31, lane), V("v_min_u32", tva, 16, tva), V("v_lshlrev_b32", tva, 7, tva)]
                  + self.field(tva, [(5, 1, 5)], init=tva)]
            Traw = {}
            for hh in range(2):
                for e in range(2):
                    Traw[hh, e] = VReg("Traw", 8)
                    for half in range(2):
                        og.append(BLOAD("buffer_load_dwordx4", Traw[hh, e][4 * half:4 * half + 4], tva, SW, s_tld,
                                        hh * 2176 + 64 * e + 16 * half, "sc1"))
            self.place(og, F[P2 + 2], F[P2 + 3] - 1)
            og = []
            Os = []
            for hh in range(2):
                O = VReg("O", 16)
                Os.append(O)
                for e in range(2):
                    T = Traw[hh, e]
                    og += [V("v_cvt_pk_bf16_f32", T[k], T[2 * k], T[2 * k + 1]) for k in range(4)]
                for e in range(2):
                    og.append(MFMA(32, O, Traw[hh, e][0:4], qacc[8 * e + 4 * hh:8 * e + 4 * hh + 4], O if e else 0))
            for hh in range(2):
                O = Os[hh]
                og += [V("v_add_f32", O[8], 0x358637BD, O[8]), V("v_rcp_f32", O[8], O[8])]
                og += [V("v_mul_f32", O[k], O[8], O[k]) for k in range(8)]
                og += [V("v_cvt_pk_bf16_f32", O[k], O[2 * k], O[2 * k + 1]) for k in range(4)]
                og.append([S(f"s_add_u32 {s_side}, {s_hst2}, {(14 + hh) * 8192}"),
                           BSTORE("buffer_store_dwordx4", O[0:4], self.vl16, SW, s_side, 0, "sc1", "S4")])
            self.place(og, F[P2 + 4], F[P2 + 6] - 1)
            ts3, ts4 = P2 + OPT.get("s3", 3), P2 + OPT.get("s4", 7)
            self.prebar.setdefault(ts3, []).extend(["S3", "gate"])
            self.place([self.signal(s_f2sig, 1 << 16)], bar(ts3), bar(ts3))
            self.prebar.setdefault(ts4, []).append("S4")
            self.place([self.signal(s_f2sig, 1 << 24)], bar(ts4), bar(ts4))
        else:
            skip = self.label("nof0")
            tz, tz2 = VReg("tz"), VReg("tz2")
            self.place([[V("v_mov_b32", tz, 1), S(f"s_lshl_b32 {s_side}, {s_j}, 2"), V("v_mov_b32", tz2, s_side),
                         S(f"s_or_b32 {s_side}, {s_rb}, {s_w}"), S(f"s_cmp_lg_u32 {s_side}, 0"), S(f"s_cbranch_scc1 {skip}"),
                         GSTORE("global_store_dword", tz2, tz, sDBG, 0, "sc1", counted=False), LABEL(skip)]], bar(0), bar(0))
            self.vgh, self.vuh = VReg("vgh"), VReg("vuh")
            th = VReg("th")
            self.half_setup = [[V("v_lshrrev_b32", th, 2, lane), S(f"s_movk_i32 {s_side}, 3584"),
                                V("v_mul_u32_u24", self.vgh, s_side, th)] + self.field(self.vgh, [(0, 2, 4)], init=self.vgh)
                               + [V("v_xor_b32", self.vuh, 32, self.vgh)]]
            self.place(self.half_setup, F[4], F[4])
            g = self.field(bgh, [(4, 1, 10), (5, 1, 9), (2, 2, 6), (4, 1, 5), (0, 2, 3)])
            self.place([g + [S(f"s_lshl_b32 {s_side}, {s_c}, 5"), V("v_xor_b32", bgh, s_side, bgh)]], F[14], F[14])
            gu = self.gu_epi(accs["g0"][0], s_hst2, 0, "S1") + self.gu_epi(accs["g0"][1], s_hst2, 1, "S1")
            self.place(gu, F[8], F[11] - 1)
            f0i, f0c = self.poll_f0()
            self.place([f0i], F[10], F[10])
            self.place([f0c], F[12], F[12])
            self.prebar.setdefault(12, []).append("S1")
            self.place([self.signal(s_f2sig, 1)], bar(12), bar(12))
            gu = self.gu_epi(accs["g1"][0], s_hst2, 4, "S2") + self.gu_epi(accs["g1"][1], s_hst2, 5, "S2")
            self.place(gu, F[16], F[18] + 3)
            self.prebar.setdefault(19, []).append("S2")
            self.place([self.signal(s_f2sig, 1 << 8)], bar(19), bar(19))
            gu = self.gu_epi(accs["gh"], s_hst1, 12, "S3")
            self.place(gu, F[P2], F[P2 + 1] - 1)
            ts3 = P2 + OPT.get("s3b", 2)
            self.prebar.setdefault(ts3, []).extend(["S3", "gate"])
            self.place([self.signal(s_f2sig, 1 << 16)], bar(ts3), bar(ts3))
        self.place(w2base, F[18], F[18])
        sets = [(0, 8, range(0, 4), 17, 18), (8, 8, range(4, 8), P2 + 1, P2 + 2), (16, 16, range(8, 14), P2 + 5, P2 + 6),
                (24, 8, range(14, 18), P2 + 10, P2 + 11)]
        for shift, want, chs, t_issue, t_chk in sets:
            pi, pc = self.poll_cnt(s_f2wait, shift, want)
            self.place([pi], F[t_issue], F[t_issue])
            self.place([pc], F[t_chk], F[t_chk])
            n = len(chs)
            self.place([hload(ch) for ch in chs], F[t_chk] + 1, F[t_chk] + 2 * n)
        gv, ga2 = VReg("gv"), VReg("ga2")
        self.place([[S(f"s_lshl_b32 {s_side}, {s_rb2}, 1"), S(f"s_add_u32 {s_side}, {s_side}, {s_c}"),
                     S(f"s_lshl_b32 {s_side}, {s_side}, 7"), S(f"s_add_u32 {s_side}, {s_side}, {WS_G}")]
                    + self.field(ga2, [(0, 5, 2)]) + [BLOAD("buffer_load_dword", gv, ga2, SW, s_side, 0, "sc1")]],
                   F[P2 + 10] + 1, F[P2 + 10] + 1)
        og_ = VReg("omg")
        g = [V("v_sub_f32", og_, 1.0, gv)]
        for nt in range(2):
            g += [V("v_mul_f32", accH[nt][k], og_, accH[nt][k]) for k in range(16)]
        self.place(g, F[P2 + 15], F[P2 + 17] - 1)

        last = slot_of[("w2", 17)]
        RB = 0 if last >= 5 else 163840 - 69632
        assert not (RB <= last * SLOT < RB + 69632) and not (RB < (last + 1) * SLOT <= RB + 69632)
        T = self.tail
        wa_, ra_, oa_ = VReg("redw"), VReg("redr"), VReg("outa")
        tr = VReg("tr")
        setup = [S(f"s_mul_i32 {s_side}, {s_w}, 8704"), S(f"s_add_u32 {s_side}, {s_side}, {RB}"),
                 V("v_and_b32", tr, 31, lane), S(f"s_movk_i32 {s_t2}, 272"), V("v_mul_u32_u24", wa_, s_t2, tr),
                 V("v_add_u32", wa_, s_side, wa_)] + self.field(wa_, [(5, 1, 4)], init=wa_)
        setup += [S(f"s_mul_i32 {s_side}, {s_c}, {4 * 8704}"), S(f"s_mul_i32 {s_t1}, {s_r}, {8 * 272}"),
                  S(f"s_add_u32 {s_side}, {s_side}, {s_t1}"), S(f"s_add_u32 {s_side}, {s_side}, {RB}"),
                  V("v_lshrrev_b32", tr, 4, lane), V("v_mul_u32_u24", ra_, s_t2, tr), V("v_add_u32", ra_, s_side, ra_)]
        setup += self.field(ra_, [(0, 4, 4)], init=ra_)
        setup += [S(f"s_lshl_b32 {s_side}, {s_w}, 13")] + self.field(oa_, [(4, 2, 10), (0, 4, 3)], init=s_side)
        self.place([setup], F[P2 + 16], F[P2 + 16])
        T += self.stamp()
        for nt in range(2):
            for qq in range(4):
                T += [V("v_fmac_f32", accH[nt][4 * qq + k], gv, accO[nt][4 * qq + k]) for k in range(4)]
                T.append(DSW("ds_write_b128", wa_, accH[nt][4 * qq:4 * qq + 4], 128 * nt + 32 * qq))
        T += [WAITLGKM(), BAR()]
        parts = {}
        for i in range(2):
            for kq in range(4):
                parts[i, kq] = VReg("part", 4)
                T.append(DSR("ds_read_b128", parts[i, kq], ra_, kq * 8704 + i * 4 * 272))
        for i in range(2):
            for k in range(4):
                T.append(V("v_add_f32", parts[i, 0][k], parts[i, 0][k], parts[i, 1][k]))
                T.append(V("v_add_f32", parts[i, 2][k], parts[i, 2][k], parts[i, 3][k]))
            for k in range(4):
                T.append(V("v_add_f32", parts[i, 0][k], parts[i, 0][k], parts[i, 2][k]))
            T += [V("v_cvt_pk_bf16_f32", parts[i, 0][0], parts[i, 0][0], parts[i, 0][1]),
                  V("v_cvt_pk_bf16_f32", parts[i, 0][1], parts[i, 0][2], parts[i, 0][3])]
            if i:
                T.append(S(f"s_movk_i32 {s_side}, 4096"))
            T.append(BSTORE("buffer_store_dwordx2", parts[i, 0][0:2], oa_, SOUT, s_side if i else 0))
        if OPT["stamp"]:
            T += [WAITALL()] + self.stamp()
            sa = VReg("sa")
            T += [S(f"s_lshl_b32 {s_side}, s2, 3"), S(f"s_add_u32 {s_side}, {s_side}, {s_w}"), S(f"s_lshl_b32 {s_side}, {s_side}, 8"),
                  S(f"s_add_u32 {s_side}, {s_side}, {WS_STAMP}"), V("v_lshlrev_b32", sa, 2, lane),
                  BSTORE("buffer_store_dword", self.vst, sa, SW, s_side)]

        out = list(P)
        out += [WAITVM(*steps[0]), BAR()]
        for m in range(D):
            out += M[m][0]
        step_at = {F[tt + 1] - D: tt for tt in range(len(steps) - 1)}
        pend = []
        for m in range(len(M)):
            if m in step_at:
                tt = step_at[m]
                out.append(COMMENT(f"---- end of step {tt}"))
                out += self.stamp()
                out += [WAITLGKM(), WAITVM(*(steps[tt + 1] + self.prebar.get(tt, []))), BAR()]
                pend = [self.dma_item(it, slot_of[it]) for it in issue_at[tt]]
            if m + D < len(M):
                out += M[m + D][0]
            out.append(M[m][1])
            if pend:
                out += pend.pop(0)
            for g in self.side.get(m, []):
                out += g
        out += T
        out.append(S("s_endpgm"))
        return out

    def text(self):
        prog = self.build()
        prog, peak = finish(prog, 256)
        lines = [i.text() for i in prog]
        for slow, back, fn in self.slow:
            loop = slow + "_l"
            lines += [f"{slow}:", f"    s_mov_b32 {s_spin}, {OPT['spin']}", f"{loop}:"]
            lines += ["    " + x for x in fn()]
            lines += [f"    s_cbranch_scc1 {back}", "    s_sleep 1", f"    s_sub_u32 {s_spin}, {s_spin}, 1",
                      f"    s_cmp_lg_u32 {s_spin}, 0", f"    s_cbranch_scc1 {loop}", f"    s_branch {back}"]
        n = {}
        for i in prog:
            n[i.kind] = n.get(i.kind, 0) + 1
        print(self.typ, "peak vgpr", peak, n, file=sys.stderr)
        print(self.typ, "issue_at", {k: [f"{a}{b}@{self.slot_of[(a, b)]}" for a, b in v] for k, v in self.issue_at.items() if v},
              file=sys.stderr)
        return "\n".join(lines)


def main():
    ref = open(f"cdna_kernels/{NAME}.s.ref").read().splitlines()
    head = [l for l in ref if l.startswith(";") and "@launch" not in l]
    o = head + ["; @launch grid=(256,1,1) block=(512,1,1) lds=163840",
                '.amdgcn_target "amdgcn-amd-amdhsa--gfx950"', ".text", f".globl {NAME}_kernel", ".p2align 8",
                f".type {NAME}_kernel,@function", f"{NAME}_kernel:"]
    o += ["    " + x for x in f"""s_cmp_ge_u32 s2, 256
s_cbranch_scc1 L_exit
s_load_dwordx16 s[4:19], s[0:1], 0
s_load_dwordx8 s[20:27], s[0:1], 64
s_and_b32 {s_t0}, s2, 7
s_lshr_b32 {s_t1}, s2, 3
s_and_b32 {s_rb}, {s_t0}, 1
s_lshl_b32 {s_rb}, {s_rb}, 3
s_and_b32 {s_t2}, {s_t1}, 7
s_add_u32 {s_rb}, {s_rb}, {s_t2}
s_lshr_b32 {s_cg}, {s_t0}, 1
s_lshl_b32 {s_cg}, {s_cg}, 2
s_lshr_b32 {s_t2}, {s_t1}, 3
s_add_u32 {s_cg}, {s_cg}, {s_t2}
s_lshr_b32 {s_j}, {s_cg}, 1
s_lshl_b32 {s_rb2}, {s_t0}, 2
s_and_b32 {s_t2}, {s_t1}, 3
s_add_u32 {s_rb2}, {s_rb2}, {s_t2}
s_lshr_b32 {s_cb}, {s_t1}, 2
s_bitcmp1_b32 {s_cg}, 0
s_cbranch_scc1 L_typeB""".splitlines()]
    o.append(Prog("A").text())
    o.append("L_exit:\n    s_endpgm")
    o.append(".p2align 6\nL_typeB:")
    o.append(Prog("B").text())
    o.append(f""".section .rodata,"a"
.p2align 6
.amdhsa_kernel {NAME}_kernel
  .amdhsa_next_free_vgpr 256
  .amdhsa_next_free_sgpr 102
  .amdhsa_accum_offset 256
  .amdhsa_group_segment_fixed_size 0
  .amdhsa_kernarg_size 96
  .amdhsa_user_sgpr_count 2
  .amdhsa_user_sgpr_kernarg_segment_ptr 1
  .amdhsa_system_sgpr_workgroup_id_x 1
.end_amdhsa_kernel""")
    open(sys.argv[1], "w").write("\n".join(o) + "\n")


main()
```

```python
import os, sys
sys.path.insert(0, os.path.dirname(os.path.abspath(__file__)))
from asmfw import *

NAME = "gated_mix__linear_kernel_hedgehog__glu_gated_glu__prompt"
OPT = dict(stamp=0, D=2, nslot=10, spin=1 << 22)
for a in sys.argv[2:]:
    k, v = a.split("=")
    OPT[k] = int(v)
D = OPT["D"]
SLOT = 16384

WS_H = 0
WS_Z = 0x900000
ZBLK = 9216
WS_G = 0x920000
WS_STAMP = 0x930000
WS_SIZE = 0xA00000

sX, sQKV, sPHI, sWO, sWG, sWU, sWD = "s[4:5]", "s[6:7]", "s[8:9]", "s[10:11]", "s[14:15]", "s[16:17]", "s[18:19]"
sGW, sOUTP, sDBG, sWS = "s[20:21]", "s[22:23]", "s[24:25]", "s[26:27]"
SX, SQ, SG, SU, SD, SO, SW, SOUT = ("s[28:31]", "s[32:35]", "s[36:39]", "s[40:43]", "s[44:47]", "s[48:51]",
                                    "s[52:55]", "s[56:59]")
s_w, s_r, s_c, s_j, s_rb, s_rb2, s_cb, s_cg = "s60", "s61", "s62", "s63", "s64", "s65", "s66", "s67"
s_w2048, s_u, s_h, s_R1, s_R3, s_R3h, s_L, s_nL = "s68", "s69", "s70", "s71", "s72", "s73", "s74", "s75"
s_so0, s_so1, s_side = "s76", "s77", "s78"
s_hst2, s_hst1, s_hld, s_tat, s_tld, s_f2sig, s_f2wait, s_f1 = "s79", "s80", "s81", "s82", "s83", "s84", "s85", "s86"
s_t0, s_t1, s_t2 = "s87", "s88", "s89"
s_mask = "s[90:91]"
s_spin, s_ph = "s92", "s93"
s_ts = "s[94:95]"
s_rot, s_roth, s_rot2 = "s100", "s101", "s3"


def srd_lo(s):
    return int(s[2:s.index(":")])


class Prog:
    def __init__(self, typ):
        self.typ = typ
        self.pro = []
        self.main = []
        self.first = {}
        self.side = {}
        self.prebar = {}
        self.tail = []
        self.slow = []
        self.v0 = VReg("v0", fixed=0)
        self.nstamp = 0
        self.vst = VReg("stamps", long=True) if OPT["stamp"] else None
        self.nlab = 0

    def label(self, n):
        self.nlab += 1
        return f"L{self.typ}_{n}_{self.nlab}"

    def stamp(self):
        if not OPT["stamp"]:
            return []
        return [WAITLGKM()] + self.stamp_issue() + self.stamp_collect()

    def stamp_issue(self):
        if not OPT["stamp"]:
            return []
        self.stamp_pending = True
        return [S(("s_memrealtime " if OPT["stamp"] == 1 else "s_memtime ") + s_ts)]

    def stamp_collect(self):
        if not OPT["stamp"] or not getattr(self, "stamp_pending", False):
            return []
        self.stamp_pending = False
        k = self.nstamp
        self.nstamp += 1
        i = Inst("v_writelane_b32", [self.vst.ref(), "s94", k], [self.vst], [self.vst], "valu")
        return [S("s_waitcnt lgkmcnt(0)"), i]

    def place(self, groups, m0, m1):
        groups = [g if isinstance(g, list) else [g] for g in groups]
        tot = sum(sum(i.cost for i in g) for g in groups) or 1.0
        n = m1 - m0 + 1
        acc = 0.0
        for g in groups:
            m = m0 + min(n - 1, int(acc / tot * n))
            self.side.setdefault(m, []).append(g)
            acc += sum(i.cost for i in g)

    def lds(self, base, addr):
        fix = []
        if not (0 <= addr - base.bias < 65536):
            nb = addr & ~0xFFFF
            fix.append(V("v_add_u32", base, nb - base.bias, base))
            base.bias = nb
        return fix, addr - base.bias

    def trfrag(self, base, addr, step2):
        f = VReg("frag", 4)
        fix, imm = self.lds(base, addr)
        assert imm + step2 < 65536
        return f, fix + [DSR("ds_read_b64_tr_b16", f[0:2], base, imm), DSR("ds_read_b64_tr_b16", f[2:4], base, imm + step2)]

    def field(self, dst, fields, init=None):
        out = []
        t = VReg("ft")
        cur = init
        for lo, width, pos in fields:
            out.append(V("v_bfe_u32", t, self.lane, lo, width))
            if cur is None:
                out.append(V("v_lshlrev_b32", dst, pos, t))
            else:
                out.append(V("v_lshl_add_u32", dst, t, pos, cur))
            cur = dst
        return out

    def srd(self, s, ptr, shift, total, minus=0):
        a, p = srd_lo(s), srd_lo(ptr)
        o = []
        if shift is None:
            o += [S(f"s_mov_b32 s{a}, s{p}"), S(f"s_mov_b32 s{a+1}, s{p+1}"), S(f"s_mov_b32 s{a+2}, {total}")]
        else:
            o += [S(f"s_add_u32 s{a}, s{p}, {shift}"), S(f"s_addc_u32 s{a+1}, s{p+1}, 0"),
                  S(f"s_sub_u32 s{a+2}, {total + minus}, {shift}")]
            if minus:
                o += [S(f"s_sub_u32 s{a}, s{a}, {minus}"), S(f"s_subb_u32 s{a+1}, s{a+1}, 0")]
        o.append(S(f"s_mov_b32 s{a+3}, 0x20000"))
        return o

    def poll_cnt(self, soff, shift, want):
        vp = VReg("poll")
        issue = [BLOAD("buffer_load_dword", vp, self.vzero, SW, soff, 0, "sc1")]
        slow, back = self.label("slow"), self.label("back")
        chk = [RFL(s_t0, vp), S(f"s_bfe_u32 {s_t0}, {s_t0}, {hex((8 << 16) | shift)}"),
               S(f"s_cmp_eq_u32 {s_t0}, {want}"), S(f"s_cbranch_scc0 {slow}"), LABEL(back), KEEP(vp, self.vzero)]
        self.slow.append((slow, back, lambda: [
            f"buffer_load_dword {vp.ref().text()}, {self.vzero.ref().text()}, {SW}, {soff} offen sc1",
            "s_waitcnt vmcnt(0)", f"v_readfirstlane_b32 {s_t0}, {vp.ref().text()}", "s_nop 1",
            f"s_bfe_u32 {s_t0}, {s_t0}, {hex((8 << 16) | shift)}", f"s_cmp_eq_u32 {s_t0}, {want}"]))
        return issue, chk

    def poll_f0(self):
        vp, va = VReg("poll"), VReg("polla")
        issue = self.field(va, [(0, 3, 2)]) + [GLOAD("global_load_dword", vp, va, sDBG, 0, "sc1")]
        slow, back = self.label("slow"), self.label("back")
        chk = [VCMP("v_cmp_ne_u32", "vcc", 0, vp), S("s_cmp_eq_u64 vcc, -1"), S(f"s_cbranch_scc0 {slow}"),
               LABEL(back), KEEP(vp, va)]
        self.slow.append((slow, back, lambda: [
            f"global_load_dword {vp.ref().text()}, {va.ref().text()}, {sDBG} sc1", "s_waitcnt vmcnt(0)",
            f"v_cmp_ne_u32 vcc, 0, {vp.ref().text()}", "s_nop 1", "s_cmp_eq_u64 vcc, -1"]))
        return issue, chk

    def signal(self, soff, val):
        skip = self.label("nosig")
        t = VReg("sigv")
        a = BSTORE("buffer_atomic_add", t, self.vzero, SW, soff, counted=False)
        return [V("v_mov_b32", t, val), S(f"s_cmp_lg_u32 {s_w}, 0"), S(f"s_cbranch_scc1 {skip}"),
                S("s_mov_b64 exec, 1"), a, S("s_mov_b64 exec, -1"), LABEL(skip)]

    def rot(self, dst, reg, i, mask, mul, add=0, base=None):
        if not OPT.get("rot", 1):
            v = (i & mask) * mul + add
            return [S(f"s_add_u32 {dst}, {base}, {v}") if base else S(f"s_mov_b32 {dst}, {v}")]
        o = [S(f"s_add_u32 {dst}, {reg}, {i}"), S(f"s_and_b32 {dst}, {dst}, {mask}"), S(f"s_mul_i32 {dst}, {dst}, {mul}")]
        if add:
            o.append(S(f"s_add_u32 {dst}, {dst}, {add & 0xFFFFFFFF}"))
        if base:
            o.append(S(f"s_add_u32 {dst}, {dst}, {base}"))
        return o

    def dma_item(self, it, slot):
        kind, i = it
        tag = it
        o = [S(f"s_add_u32 m0, {s_w2048}, {slot * SLOT}")]
        if kind == "x":
            o += self.rot(s_so0, s_rot, i, 7, 128) + [DMA(self.vx0, SX, s_so0, 0, tag), DMA(self.vx1, SX, s_so0, 1024, tag)]
        elif kind == "kv":
            o += self.rot(s_so0, s_rot, i, 7, 64 * 3072, 1024) + [DMA(self.vkv, SQ, s_so0, 0, tag),
                                                                  DMA(self.vkv, SQ, s_so0, 1024, tag)]
        elif kind == "q":
            o += self.rot(s_so0, s_rot, 2 * i, 7, 64 * 3072) + [DMA(self.vkv, SQ, s_so0, 0, tag)]
            o += [S(f"s_add_u32 m0, {s_w2048}, {slot * SLOT + 1024}")]
            o += self.rot(s_so1, s_rot, 2 * i + 1, 7, 64 * 3072) + [DMA(self.vkv, SQ, s_so1, 0, tag)]
        elif kind in ("g0", "g1"):
            u = int(kind[1])
            o += self.rot(s_so0, s_rot, i, 7, 64 * 3584, 128 * u, s_u if self.typ == "B" else None)
            o += [DMA(self.vg, SG, s_so0, 0, tag), DMA(self.vu, SU, s_so0, 1024, tag)]
        elif kind == "gh":
            assert OPT.get("rot", 1)
            o += self.rot(s_so0, s_roth, 2 * i, 7, 64 * 3584, 0, s_h)
            o += [DMA(self.vgh, SG, s_so0, 0, tag), DMA(self.vuh, SU, s_so0, 1024, tag)]
        elif kind == "w2":
            if i < 8:
                base, srd, rows, k, mask = s_R1, SD, 64 * (i >> 2), i & 3, 3
            elif i < 12:
                base, srd, rows, k, mask = s_R3, SD, 0, i - 8, 3
            elif i < 14:
                base, srd, rows, k, mask = s_R3h, SD, 0, i - 12, 1
            else:
                base, srd, rows, k, mask = s_R3, SO, 0, i - 14, 3
            o += self.rot(s_so0, s_rot2, k, mask, 16384, rows * 1024, base)
            o += [DMA(self.vw2a, srd, s_so0, 0, tag), DMA(self.vw2b, srd, s_so0, 1024, tag)]
        return o

    def half_srd(self):
        d = s_side
        o = [S(f"s_lshl_b32 {d}, {s_r}, 4"), S(f"s_lshl_b32 {s_t2}, {s_w}, 3"), S(f"s_sub_i32 {d}, {d}, {s_t2}"),
             S(f"s_mul_i32 {d}, {d}, 3584"), S(f"s_ashr_i32 {s_t2}, {d}, 31")]
        for srd in (SG, SU):
            a = srd_lo(srd)
            o += [S(f"s_add_u32 s{a}, s{a}, {d}"), S(f"s_addc_u32 s{a+1}, s{a+1}, {s_t2}"), S(f"s_sub_u32 s{a+2}, s{a+2}, {d}")]
        return o

    def touch(self, which):
        A = self.typ == "A"
        a, col, off, pit, sh, lst = s_side, s_t2, s_t0, s_t1, "s96", "s97"
        ptr = "s[98:99]"

        def unit(p, pitch, extra):
            return [f"s_mov_b64 {ptr}, {p}", f"s_movk_i32 {pit}, {pitch}", f"s_mul_i32 {off}, {a}, {64 * pitch}",
                    f"s_add_u32 {off}, {off}, {extra}", f"s_add_u32 {off}, {off}, {col}", f"s_mov_b32 {sh}, 0",
                    f"s_mov_b32 {lst}, 0"]

        def wch(p, pitch, extra, c0):
            return [f"s_mov_b64 {ptr}, {p}", f"s_mov_b32 {pit}, {64 * pitch}", f"s_mul_i32 {off}, {a}, {8 * pitch}",
                    f"s_add_u32 {off}, {off}, {extra + c0 * 64 * pitch}", f"s_add_u32 {off}, {off}, {col}",
                    f"s_mov_b32 {sh}, 3", f"s_movk_i32 {lst}, {pitch}", "s_mov_b32 exec_hi, 0"]

        def xt(c0):
            return [f"s_mov_b64 {ptr}, {sX}", f"s_movk_i32 {pit}, 1024", f"s_and_b32 {off}, {s_cg}, 3",
                    f"s_lshl_b32 {off}, {off}, 15", f"s_lshl_b32 {sh}, {s_rb}, 17", f"s_add_u32 {off}, {off}, {sh}",
                    f"s_add_u32 {off}, {off}, {c0 * 128}", f"s_mov_b32 {sh}, 1", f"s_movk_i32 {lst}, 128"]
        wd = [f"s_mov_b64 {ptr}, {sWD}", f"s_movk_i32 {pit}, 1024", f"s_mul_i32 {off}, s2, 7168",
              f"s_mov_b32 {sh}, 3", f"s_movk_i32 {lst}, 128", "s_mov_b32 exec_hi, 0xffffff"]
        wo = [f"s_mov_b64 {ptr}, {sWO}", f"s_movk_i32 {pit}, 1024", f"s_lshl_b32 {off}, s2, 11",
              f"s_mov_b32 {sh}, 3", f"s_movk_i32 {lst}, 128", "s_mov_b64 exec, 0xffff"]
        if A:
            colA = [f"s_lshl_b32 {col}, {s_j}, 7"]
            tab = {"a": [xt(0), xt(2), colA + wch(sQKV, 3072, 1024, 0), colA + wch(sQKV, 3072, 2048, 0)],
                   "b": [xt(4), xt(6), colA + wch(sQKV, 3072, 1024, 4), colA + wch(sQKV, 3072, 2048, 4)],
                   "c": [colA + unit(sWG, 3584, 0)], "d": [colA + unit(sWU, 3584, 0)],
                   "e": [colA + unit(sQKV, 3072, 0)], "f": [], "g": [wd, wo]}
        else:
            col0 = [f"s_lshr_b32 {col}, {s_j}, 1", f"s_mul_i32 {col}, {col}, 640", f"s_add_u32 {col}, {col}, 1024"]
            colB = col0 + [f"s_and_b32 {off}, {s_j}, 1", f"s_mul_i32 {off}, {off}, 384", f"s_add_u32 {col}, {col}, {off}"]
            tab = {"a": [xt(0), xt(2), colB + wch(sWG, 3584, 0, 0), colB + wch(sWU, 3584, 0, 0)],
                   "b": [xt(4), xt(6), colB + wch(sWG, 3584, 0, 4), colB + wch(sWU, 3584, 0, 4)],
                   "c": [colB + unit(sWG, 3584, 128)], "d": [colB + unit(sWU, 3584, 128)],
                   "e": [col0 + unit(sWG, 3584, 256)], "f": [col0 + unit(sWU, 3584, 256)], "g": [wd, wo]}
        blocks = tab[which]
        if not blocks:
            return []
        join, done = self.label("tj"), self.label("td")
        txt = [f"s_bfe_u32 {a}, s2, 0x30003"]
        labs = [self.label("tb") for _ in blocks]
        for k in range(len(blocks)):
            txt += [f"s_cmp_eq_u32 {s_w}, {k}", f"s_cbranch_scc1 {labs[k]}"]
        txt.append(f"s_branch {done}")
        out = [S(x, cost=0.1) for x in txt]
        for k in range(len(blocks)):
            out.append(LABEL(labs[k]))
            out += [S(x, cost=0.1) for x in blocks[k]]
            if k != len(blocks) - 1:
                out.append(S(f"s_branch {join}"))
        out.append(LABEL(join))
        vt, vr = VReg("vt"), VReg("vr")
        ld = GLOAD("global_load_dword", self.vdummy, vt, ptr, 0, "nt" if OPT.get("tnt", 0) and which != "g" else "", counted=False)
        ld.defs = []
        out += [V("v_lshrrev_b32", vr, sh, self.lane), V("v_lshlrev_b32", vt, sh, vr), V("v_sub_u32", vt, self.lane, vt),
                V("v_mul_u32_u24", vt, lst, vt), V("v_mad_u32_u24", vt, vr, pit, vt), V("v_add_u32", vt, off, vt),
                ld, S("s_mov_b64 exec, -1"), LABEL(done)]
        return out

    def gu_epi(self, acc, sbase, ch, tag):
        g = []
        for k in range(8):
            g.append(V("v_mul_f32", acc[k], s_nL, acc[k]))
        for k in range(8):
            g.append(V("v_exp_f32", acc[k], acc[k]))
        for k in range(8):
            g.append(V("v_add_f32", acc[k], 1.0, acc[k]))
        for k in range(8):
            g.append(V("v_rcp_f32", acc[k], acc[k]))
        for k in range(8):
            g.append(V("v_mul_f32", acc[8 + k], acc[k], acc[8 + k]))
        for k in range(4):
            g.append(V("v_cvt_pk_bf16_f32", acc[k], acc[8 + 2 * k], acc[9 + 2 * k]))
        g.append([S(f"s_add_u32 {s_side}, {sbase}, {ch * 8192}"),
                  BSTORE("buffer_store_dwordx4", acc[0:4], self.vl16, SW, s_side, 0, "sc1", tag)])
        return g

    def phi_epi(self, acc):
        g = []
        kb, P = VReg("kb", 8), VReg("P", 16)
        for k in range(8):
            g.append(V("v_cvt_pk_bf16_f32", kb[k], acc[2 * k], acc[2 * k + 1]))
        g.append(MFMA(32, P, self.A0, kb[0:4], 0))
        g.append(MFMA(32, P, self.A1, kb[4:8], P))
        n_head = len(g)
        mx, mn = VReg("mx"), VReg("mn")
        g.append(V("v_max3_f32", mx, P[0], P[1], P[2]))
        g.append(V("v_min3_f32", mn, P[0], P[1], P[2]))
        for k in range(3, 15, 2):
            g.append(V("v_max3_f32", mx, mx, P[k], P[k + 1]))
            g.append(V("v_min3_f32", mn, mn, P[k], P[k + 1]))
        g.append(V("v_max_f32", mx, mx, P[15]))
        g.append(V("v_min_f32", mn, mn, P[15]))
        g.append(V("v_mul_f32", mx, s_nL, mx))
        g.append(V("v_mul_f32", mn, s_L, mn))
        for k in range(16):
            g.append(V("v_fma_f32", acc[k], P[k], s_L, mx))
            g.append(V("v_fma_f32", P[k], P[k], s_nL, mn))
            if k:
                g.append(V("v_exp_f32", acc[k - 1], acc[k - 1]))
                g.append(V("v_exp_f32", P[k - 1], P[k - 1]))
        g.append(V("v_exp_f32", acc[15], acc[15]))
        g.append(V("v_exp_f32", P[15], P[15]))
        sp, sn = VReg("sp"), VReg("sn")
        g.append(V("v_add_f32", sp, acc[0], acc[1]))
        g.append(V("v_add_f32", sn, P[0], P[1]))
        for k in range(2, 16):
            g.append(V("v_add_f32", sp, sp, acc[k]))
            g.append(V("v_add_f32", sn, sn, P[k]))
        g.append(V("v_rcp_f32", sp, sp))
        g.append(V("v_rcp_f32", sn, sn))
        for k in range(8):
            g.append(V("v_mul_f32", acc[2 * k], sp, acc[2 * k]))
            g.append(V("v_mul_f32", acc[2 * k + 1], sp, acc[2 * k + 1]))
            g.append(V("v_cvt_pk_bf16_f32", acc[k], acc[2 * k], acc[2 * k + 1]))
        for k in range(8):
            g.append(V("v_mul_f32", P[2 * k], sn, P[2 * k]))
            g.append(V("v_mul_f32", P[2 * k + 1], sn, P[2 * k + 1]))
            g.append(V("v_cvt_pk_bf16_f32", acc[8 + k], P[2 * k], P[2 * k + 1]))
        return g, n_head

    def build(self):
        A = self.typ == "A"
        P = self.pro
        self.lane = lane = VReg("lane", long=True)
        t = VReg("t")
        P += [V("v_lshrrev_b32", t, 6, self.v0), V("v_and_b32", lane, 63, self.v0), RFL(s_w, t)]
        if OPT["stamp"]:
            P += [V("v_mov_b32", self.vst, 0)]
        self.vx0, self.vx1 = VReg("vx0"), VReg("vx1")
        q, p, q1 = VReg("q"), VReg("p"), VReg("q1")
        P += [V("v_lshrrev_b32", q, 3, lane), V("v_and_b32", p, 7, lane), V("v_lshrrev_b32", q1, 4, lane),
              V("v_xor_b32", t, p, q1), V("v_lshlrev_b32", t, 4, t), V("v_lshl_add_u32", self.vx0, q, 10, t),
              V("v_xor_b32", self.vx1, 64, self.vx0), V("v_add_u32", self.vx1, 7168, self.vx1),
              V("v_and_b32", q1, 1, q1)]
        self.vg, self.vu = VReg("vg", long=True), VReg("vu", long=True)
        t2 = VReg("t2")
        P += [S(f"s_movk_i32 {s_t0}, 3584"), V("v_lshlrev_b32", t, 1, q1), V("v_xor_b32", t, p, t),
              V("v_lshlrev_b32", t, 4, t), V("v_mad_u32_u24", self.vg, q, s_t0, t), V("v_xor_b32", self.vu, 64, self.vg)]
        self.vw2a, self.vw2b = VReg("vw2a", long=True), VReg("vw2b", long=True)
        P += [V("v_lshlrev_b32", t2, 2, q1), V("v_xor_b32", t2, p, t2), V("v_lshlrev_b32", t2, 4, t2),
              V("v_lshl_add_u32", self.vw2a, q, 10, t2), V("v_add_u32", self.vw2b, 7168, self.vw2a)]
        if A:
            self.vkv = VReg("vkv", long=True)
            P += [S(f"s_movk_i32 {s_t1}, 3072"), V("v_mad_u32_u24", self.vkv, q, s_t1, t2)]
        P += [S(f"s_and_b32 {s_r}, {s_w}, 3"), S(f"s_lshr_b32 {s_c}, {s_w}, 2"), S(f"s_lshl_b32 {s_w2048}, {s_w}, 11"),
              S(f"s_mul_i32 {s_t2}, {s_w}, {8 * 3584}")]
        P += [S(f"s_bfe_u32 {s_rot}, s2, 0x30003"), S(f"s_lshr_b32 {s_t0}, s2, 6"), S(f"s_lshl_b32 {s_t0}, {s_t0}, 1"),
              S(f"s_add_u32 {s_rot}, {s_rot}, {s_t0}"), S(f"s_add_u32 {s_roth}, {s_rot}, {s_c}"),
              S(f"s_add_u32 {s_rot2}, {s_cb}, {s_rb2}")]
        if not OPT.get("rot1", 1):
            P += [S(f"s_mov_b32 {s_rot}, 0"), S(f"s_mov_b32 {s_roth}, {s_c}")]
        if not OPT.get("rot2", 1):
            P += [S(f"s_mov_b32 {s_rot2}, 0")]
        P += [S("s_waitcnt lgkmcnt(0)")]
        if OPT["stamp"]:
            P.append(Inst("v_writelane_b32", [self.vst.ref(), "s96", 0], [self.vst], [self.vst], "valu"))
            self.nstamp = 1
            P += self.stamp()
        self.vdummy = VReg("dummy", long=True)
        P.append(V("v_mov_b32", self.vdummy, 0))
        if OPT.get("touch", 0) & 1:
            P += self.touch("a")
        P += [S(f"s_mul_i32 {s_t2}, {s_w}, {8 * 3584}")]
        P += [S(f"s_lshl_b32 {s_t0}, {s_rb}, 17"), S(f"s_lshl_b32 {s_t1}, {s_w}, 14"), S(f"s_add_u32 {s_t0}, {s_t0}, {s_t1}")]
        P += self.srd(SX, sX, s_t0, 2097152)
        if A:
            P += [S(f"s_mul_i32 {s_t0}, {s_w}, {8 * 3072}"), S(f"s_lshl_b32 {s_t1}, {s_j}, 7"),
                  S(f"s_add_u32 {s_t0}, {s_t0}, {s_t1}")]
            P += self.srd(SQ, sQKV, s_t0, 1572864)
            gsetup = [S(f"s_lshl_b32 {s_t1}, {s_j}, 7"), S(f"s_add_u32 {s_t0}, {s_t2}, {s_t1}"), S(f"s_mov_b32 {s_u}, 0")]
        else:
            gsetup = [S(f"s_lshr_b32 {s_t1}, {s_j}, 1"), S(f"s_mul_i32 {s_t1}, {s_t1}, 640"),
                      S(f"s_add_u32 {s_t0}, {s_t2}, {s_t1}"), S(f"s_add_u32 {s_t0}, {s_t0}, 1024"),
                      S(f"s_and_b32 {s_t1}, {s_j}, 1"), S(f"s_mul_i32 {s_u}, {s_t1}, 384"),
                      S(f"s_lshl_b32 {s_h}, {s_t1}, 6"), S(f"s_add_u32 {s_h}, {s_h}, 256")]
        gsetup += self.srd(SG, sWG, s_t0, 1835008) + self.srd(SU, sWU, s_t0, 1835008, minus=1024)
        if not A:
            P += gsetup

        steps = []
        for i in range(8):
            steps.append([("x", i), ("kv" if A else "g0", i)])
        if A:
            steps += [[("g0", i)] for i in range(8)] + [[("q", i)] for i in range(4)]
        else:
            steps += [[("g1", i)] for i in range(8)] + [[("gh", i)] for i in range(4)]
        steps += [[("w2", i)] for i in range(18)]
        items = [it for s in steps for it in s]
        free = list(range(OPT["nslot"]))
        slot_of = {}
        nxt = 0
        issue_at = {}
        reserve_at = {6: 1, 7: 2} if A else {}
        release_at = OPT.get("xrel", 14)
        xslots = []
        for tstep in range(-1, len(steps)):
            if tstep >= 0:
                free += [slot_of[it] for it in steps[tstep]]
            for _ in range(reserve_at.get(tstep, 0)):
                xslots.append(free.pop())
            if A and tstep == release_at:
                free += xslots
            lst = []
            cap = OPT.get("pre", 4) if tstep < 0 else OPT.get("cap", 3) if tstep < 8 else 2
            while free and nxt < len(items) and len(lst) < cap:
                s = free.pop(0)
                slot_of[items[nxt]] = s
                lst.append(items[nxt])
                nxt += 1
            issue_at[tstep] = lst
        self.steps, self.slot_of, self.issue_at = steps, slot_of, issue_at

        pre = issue_at[-1]
        P += self.dma_item(pre[0], slot_of[pre[0]]) + self.dma_item(pre[1], slot_of[pre[1]])
        if A:
            P += gsetup
        if OPT.get("pbar", 1):
            P.append(BAR())
        P += self.srd(SW, sWS, None, WS_SIZE)
        self.vl16 = VReg("vl16", long=True)
        self.vzero = VReg("vzero", long=True)
        P += [V("v_lshlrev_b32", self.vl16, 4, lane), V("v_mov_b32", self.vzero, 0)]
        if not A:
            z4 = VReg("z4", 4)
            skip = self.label("nozero")
            P += [V("v_mov_b32", z4[k], 0) for k in range(4)]
            P += [S(f"s_mul_i32 {s_t0}, {s_j}, {ZBLK}"), S(f"s_add_u32 {s_t0}, {s_t0}, {WS_Z}"),
                  S(f"s_lshl_b32 {s_t1}, {s_w}, 10"), S(f"s_add_u32 {s_t1}, {s_t1}, {s_t0}"),
                  S(f"s_add_u32 {s_t0}, {s_t0}, 8192"),
                  S(f"s_cmp_lg_u32 {s_rb}, 0"), S(f"s_cbranch_scc1 {skip}"),
                  BSTORE("buffer_store_dwordx4", z4, self.vl16, SW, s_t1, 0, "sc1", counted=False),
                  BSTORE("buffer_store_dwordx4", z4, self.vl16, SW, s_t0, 0, "sc1", counted=False), LABEL(skip)]
        if OPT.get("touch", 0) & 2 and OPT.get("tb", 0) == 0:
            P += self.touch("b")
        for it in pre[2:4]:
            P += self.dma_item(it, slot_of[it])
        if OPT.get("touch", 0) & 2 and OPT.get("tb", 0) == 1:
            P += self.touch("b")
        gx, gw, ga = VReg("gx", 4), VReg("gw", 4), VReg("ga")
        P += [S(f"s_lshl_b32 {s_t0}, {s_rb}, 7"), S(f"s_lshl_b32 {s_t1}, {s_cg}, 3"), S(f"s_add_u32 {s_t0}, {s_t0}, {s_t1}"),
              S(f"s_add_u32 {s_t0}, {s_t0}, {s_w}"), S(f"s_lshl_b32 {s_t1}, {s_t0}, 10"),
              V("v_add_u32", ga, s_t1, self.vl16),
              GLOAD("global_load_dwordx4", gx, ga, sX), GLOAD("global_load_dwordx4", gw, self.vl16, sGW),
              S(f"s_lshl_b32 {s_ph}, {s_t0}, 2"), S(f"s_add_u32 {s_ph}, {s_ph}, {WS_G}")]
        if A:
            wr = [VReg("wr") for _ in range(8)]
            wa = VReg("wa")
            P += [S(f"s_lshl_b32 {s_t0}, {s_j}, 2"), S(f"s_lshl_b32 {s_t1}, {s_c}, 1"), S(f"s_add_u32 {s_t0}, {s_t0}, {s_t1}"),
                  S(f"s_lshl_b32 {s_t0}, {s_t0}, 9")]
            P += self.field(wa, [(2, 1, 9), (3, 2, 3), (0, 2, 1), (5, 1, 7)], init=s_t0)
            for k in range(8):
                P.append(GLOAD("global_load_ushort", wr[k], wa, sPHI, 256 * (k >> 2) + 32 * (k & 3)))
        for it in pre[4:]:
            P += self.dma_item(it, slot_of[it])
        P += [S(f"s_mov_b32 {s_L}, 0x3fb8aa3b"), S(f"s_mov_b32 {s_nL}, 0xbfb8aa3b")]
        P += [S(f"s_lshl_b32 {s_t0}, {s_cb}, 7")] + self.srd(SD, sWD, s_t0, 1835008) + self.srd(SO, sWO, s_t0, 524288)
        P += [S(f"s_lshl_b32 {s_t1}, {s_rb2}, 16"), S(f"s_add_u32 {s_t0}, {s_t0}, {s_t1}")] + self.srd(SOUT, sOUTP, s_t0, 2097152)
        P += [S(f"s_lshr_b32 {s_t0}, {s_w}, 1"), S(f"s_mul_i32 {s_t0}, {s_t0}, 320"), S(f"s_and_b32 {s_t1}, {s_w}, 1"),
              S(f"s_mul_i32 {s_R1}, {s_t1}, 192"), S(f"s_add_u32 {s_R1}, {s_R1}, {s_t0}"), S(f"s_add_u32 {s_R1}, {s_R1}, 512"),
              S(f"s_lshl_b32 {s_R1}, {s_R1}, 10"),
              S(f"s_lshl_b32 {s_R3h}, {s_t1}, 5"), S(f"s_add_u32 {s_R3h}, {s_R3h}, {s_t0}"), S(f"s_add_u32 {s_R3h}, {s_R3h}, 640"),
              S(f"s_lshl_b32 {s_R3h}, {s_R3h}, 10"), S(f"s_lshl_b32 {s_R3}, {s_w}, 16")]
        P += [S(f"s_lshl_b32 {s_t0}, {s_rb}, 2"), S(f"s_add_u32 {s_t0}, {s_t0}, {s_r}"), S(f"s_mul_i32 {s_t0}, {s_t0}, 144"),
              S(f"s_add_u32 {s_t0}, {s_t0}, {s_j}"), S(f"s_lshl_b32 {s_t0}, {s_t0}, 10"),
              S(f"s_lshl_b32 {s_t1}, {s_c}, 13"), S(f"s_add_u32 {s_hst1}, {s_t0}, {s_t1}"),
              S(f"s_add_u32 {s_hst2}, {s_hst1}, {s_t1}"),
              S(f"s_lshl_b32 {s_t0}, {s_rb2}, 1"), S(f"s_add_u32 {s_t0}, {s_t0}, {s_c}"), S(f"s_mul_i32 {s_t0}, {s_t0}, 144"),
              S(f"s_lshl_b32 {s_t1}, {s_r}, 1"), S(f"s_add_u32 {s_t0}, {s_t0}, {s_t1}"), S(f"s_lshl_b32 {s_hld}, {s_t0}, 10")]
        def f2off(dst, rbreg):
            return [S(f"s_lshr_b32 {s_t0}, {rbreg}, 1"), S(f"s_mul_i32 {s_t0}, {s_t0}, {ZBLK}"),
                    S(f"s_and_b32 {s_t1}, {rbreg}, 1"), S(f"s_lshl_b32 {s_t1}, {s_t1}, 7"),
                    S(f"s_add_u32 {s_t0}, {s_t0}, {s_t1}"), S(f"s_add_u32 {dst}, {s_t0}, {WS_Z + 8832}")]
        P += f2off(s_f2sig, s_rb) + [S(f"s_lshr_b32 {s_t2}, {s_rb2}, 1")] + f2off(s_f2wait, s_t2)
        if A:
            P += [S(f"s_mul_i32 {s_t0}, {s_j}, {ZBLK}"), S(f"s_add_u32 {s_t0}, {s_t0}, {WS_Z}"),
                  S(f"s_add_u32 {s_f1}, {s_t0}, 8704"),
                  S(f"s_mul_i32 {s_t1}, {s_r}, 2176"), S(f"s_add_u32 {s_tat}, {s_t0}, {s_t1}"),
                  S(f"s_lshl_b32 {s_t1}, {s_c}, 6"), S(f"s_add_u32 {s_tat}, {s_tat}, {s_t1}"),
                  S(f"s_mul_i32 {s_t1}, {s_c}, 4352"), S(f"s_add_u32 {s_tld}, {s_t0}, {s_t1}")]
        bx = [VReg(f"bx{i}") for i in range(4)]
        P += [S(f"s_lshl_b32 {s_t0}, {s_r}, 12")] + self.field(bx[0], [(0, 5, 7)], init=s_t0)
        P += [V("v_bfe_u32", t, lane, 1, 3), V("v_lshrrev_b32", t2, 5, lane), V("v_xor_b32", t, t, t2),
              V("v_lshl_add_u32", bx[0], t, 4, bx[0])]
        P += [V("v_xor_b32", bx[i], 32 * i, bx[0]) for i in range(1, 4)]
        bgu = [VReg("bgu0", long=True), VReg("bgu1", long=True)]
        gu_base = self.field(bgu[0], [(5, 1, 11), (4, 1, 10), (2, 2, 7), (0, 2, 3), (3, 2, 5)])
        gu_base += [S(f"s_lshl_b32 {s_t0}, {s_c}, 6"), V("v_xor_b32", bgu[0], s_t0, bgu[0]), V("v_xor_b32", bgu[1], 32, bgu[0])]
        if A:
            bkv = VReg("bkv")
            P += self.field(bkv, [(5, 1, 11), (2, 2, 7), (3, 1, 6), (4, 1, 5), (0, 2, 3)])
            P += [S(f"s_lshl_b32 {s_t0}, {s_c}, 6"), V("v_xor_b32", bkv, s_t0, bkv)]
        else:
            P += gu_base
        P += self.stamp()

        X = [VReg(f"X{k}", 4, long=True) for k in range(32)]
        M = self.main

        def add_slot(reads, mf):
            M.append((reads, mf))

        accs = {}
        bgh = VReg("bgh")
        bw2 = [VReg("bw20"), VReg("bw21")]
        Hf = {(ch, e): VReg(f"H{ch}_{e}", 4) for ch in range(18) for e in range(2)}
        accH = [VReg("accH0", 16), VReg("accH1", 16)]
        accO = [VReg("accO0", 16), VReg("accO1", 16)]
        for tstep, its in enumerate(steps):
            self.first[tstep] = len(M)
            kind, i = its[-1]
            sb = slot_of[its[-1]] * SLOT
            if kind in ("kv", "g0", "g1"):
                if i == 0:
                    accs[kind] = [VReg(kind + "a0", 16), VReg(kind + "a1", 16)]
                for ks in range(4):
                    xr = []
                    k = 4 * i + ks
                    if tstep < 8:
                        fix, imm = self.lds(bx[ks], slot_of[its[0]] * SLOT)
                        xr = fix + [DSR("ds_read_b128", X[k], bx[ks], imm)]
                    for tt in range(2):
                        if kind == "kv":
                            f, rd = self.trfrag(bkv, sb + ks * 4096 + tt * 1024, 512)
                        else:
                            f, rd = self.trfrag(bgu[tt], sb + ks * 4096, 512)
                        a = accs[kind][tt]
                        add_slot((xr if tt == 0 else []) + rd, MFMA(32, a, f, X[k], a if k else 0))
            elif kind == "q":
                if i == 0:
                    accs["q"] = VReg("qa", 16)
                for ks in range(8):
                    k = 8 * i + ks
                    f, rd = self.trfrag(bkv, sb + (ks & 3) * 4096 + (ks >> 2) * 1024, 512)
                    add_slot(rd, MFMA(32, accs["q"], f, X[k], accs["q"] if k else 0))
            elif kind == "gh":
                if i == 0:
                    accs["gh"] = VReg("gha", 16)
                for ks in range(8):
                    k = 8 * i + ks
                    f, rd = self.trfrag(bgh, sb + ks * 2048, 256)
                    add_slot(rd, MFMA(32, accs["gh"], f, X[k], accs["gh"] if k else 0))
            else:
                for e in range(2):
                    for nt in range(2):
                        f, rd = self.trfrag(bw2[nt], sb + e * 2048, 1024)
                        a = (accH if i < 14 else accO)[nt]
                        fresh = e == 0 and i in (0, 14)
                        add_slot(rd, MFMA(32, a, f, Hf[(i, e)], 0 if fresh else a))
        self.first[len(steps)] = len(M)
        F = self.first

        def bar(tstep):
            return F[tstep + 1] - D

        gs = VReg("gs")
        g = [V("v_mov_b32", gs, 0)]
        g += [V("v_dot2_f32_bf16", gs, gx[k], gw[k], gs) for k in range(4)]
        for sfx in ("row_shr:1", "row_shr:2", "row_shr:4", "row_shr:8"):
            g.append(V("v_add_f32", gs, gs, gs, suffix=sfx + " row_mask:0xf bank_mask:0xf bound_ctrl:0"))
        g.append(V("v_add_f32", gs, gs, gs, suffix="row_bcast:15 row_mask:0xa bank_mask:0xf", rmw=True))
        g.append(V("v_add_f32", gs, gs, gs, suffix="row_bcast:31 row_mask:0xc bank_mask:0xf", rmw=True))
        g.append([RL(s_side, gs, 63), V("v_mov_b32", gs, s_side)])
        g += [V("v_mul_f32", gs, s_nL, gs), V("v_exp_f32", gs, gs), V("v_add_f32", gs, 1.0, gs), V("v_rcp_f32", gs, gs),
              BSTORE("buffer_store_dword", gs, self.vzero, SW, s_ph, 0, "sc1", "gate")]
        self.place(g, F[2], F[3] - 1)

        def hload(ch):
            c0, mask = (ch & ~3, 3) if ch < 12 else (12, 1) if ch < 14 else (14, 3)
            return self.rot(s_side, s_rot2, ch - c0, mask, 8192, c0 * 8192, s_hld) + [
                    BLOAD("buffer_load_dwordx4", Hf[(ch, 0)], self.vl16, SW, s_side, 0, "sc1"),
                    BLOAD("buffer_load_dwordx4", Hf[(ch, 1)], self.vl16, SW, s_side, 1024, "sc1")]

        w2base = self.field(bw2[0], [(5, 1, 9), (2, 2, 7), (3, 1, 6), (4, 1, 5), (0, 2, 3)])
        w2base = [w2base + [S(f"s_lshl_b32 {s_side}, {s_r}, 12"), V("v_add_u32", bw2[0], s_side, bw2[0]),
                            V("v_xor_b32", bw2[1], 64, bw2[0])]]
        P2 = 20
        if A:
            self.A0, self.A1 = VReg("A0", 4, long=True), VReg("A1", 4, long=True)
            g = [V("v_lshl_or_b32", wr[2 * k], wr[2 * k + 1], 16, wr[2 * k]) for k in range(4)]
            tm = VReg("tm")
            g.append([V("v_and_b32", tm, 4, lane), VCMP("v_cmp_eq_u32", s_mask, 0, tm)])
            g += [V("v_cndmask_b32", self.A0[k], 0, wr[2 * k], s_mask) for k in range(4)]
            g += [V("v_cndmask_b32", self.A1[k], wr[2 * k], 0, s_mask) for k in range(4)]
            self.place(g, F[3], F[4] - 1)
            PH0, PH1, VB = xslots[0] * SLOT, xslots[1] * SLOT, xslots[2] * SLOT
            kacc, vacc = accs["kv"]
            pk, nh = self.phi_epi(kacc)
            va = VReg("va")
            vg_ = [[S(f"s_lshl_b32 {s_side}, {s_r}, 12"), S(f"s_add_u32 {s_side}, {s_side}, {VB}")]
                   + self.field(va, [(0, 5, 7), (3, 1, 6), (1, 1, 5), (2, 1, 4), (0, 1, 3)], init=s_side)]
            tv = VReg("tv")
            vg_.append([V("v_lshrrev_b32", tv, 5, lane), V("v_lshlrev_b32", tv, 3, tv), V("v_xor_b32", va, tv, va),
                        S(f"s_lshl_b32 {s_side}, {s_c}, 6"), V("v_xor_b32", va, s_side, va)])
            for qq in range(4):
                vg_ += [V("v_cvt_pk_bf16_f32", vacc[4 * qq], vacc[4 * qq], vacc[4 * qq + 1]),
                        V("v_cvt_pk_bf16_f32", vacc[4 * qq + 1], vacc[4 * qq + 2], vacc[4 * qq + 3]),
                        DSW("ds_write_b64", va, vacc[4 * qq:4 * qq + 2], 0)]
                if qq < 3:
                    vg_.append(V("v_xor_b32", va, 16 * (qq ^ (qq + 1)), va))
            pa = VReg("pa")
            pw = [[S(f"s_mov_b32 {s_side}, {(PH1 - 16384) & 0xffffffff}"), S(f"s_cmp_lt_u32 {s_r}, 2"), S(f"s_cselect_b32 {s_side}, {PH0}, {s_side}"),
                   S(f"s_lshl_b32 {s_t2}, {s_r}, 13"), S(f"s_add_u32 {s_side}, {s_side}, {s_t2}")]
                  + self.field(pa, [(0, 5, 8), (3, 1, 7), (1, 1, 6), (0, 1, 5), (2, 1, 4)], init=s_side)]
            tp = VReg("tp")
            pw.append([V("v_lshrrev_b32", tp, 5, lane), V("v_lshlrev_b32", tp, 6, tp), V("v_xor_b32", pa, tp, pa),
                       S(f"s_lshl_b32 {s_side}, {s_c}, 7"), V("v_xor_b32", pa, s_side, pa)])
            for qq in range(4):
                pw.append(DSW("ds_write_b128", pa, kacc[4 * qq:4 * qq + 4], 0))
                if qq < 3:
                    pw.append(V("v_xor_b32", pa, 16 * (qq ^ (qq + 1)), pa))
            e0, e1 = OPT.get("kve0", 8), OPT.get("kve1", 12)
            self.place(vg_ + pk + pw, F[e0], bar(e1) - 1)
            f0i, f0c = self.poll_f0()
            self.place([f0i], F[e1], F[e1])
            r1, r2, r3, r4 = VReg("rp1"), VReg("rp2"), VReg("rv1"), VReg("rv2")
            ta = VReg("ta")
            kv = [self.field(r1, [(2, 2, 8), (4, 2, 11), (4, 1, 7), (3, 1, 6), (2, 1, 5), (0, 1, 3)])
                  + [V("v_bfe_u32", ta, lane, 1, 1), V("v_lshlrev_b32", ta, 4, ta), V("v_xor_b32", r1, ta, r1),
                     S(f"s_lshl_b32 {s_side}, {s_r}, 6"), S(f"s_lshl_b32 {s_t2}, {s_c}, 5"),
                     S(f"s_add_u32 {s_side}, {s_side}, {s_t2}"), V("v_xor_b32", r1, s_side, r1), V("v_xor_b32", r2, 16, r1)]]
            kv.append(self.field(r3, [(2, 2, 7), (4, 2, 10), (4, 1, 6), (3, 1, 5), (2, 1, 3)])
                      + [V("v_and_b32", ta, 3, lane), V("v_lshlrev_b32", ta, 3, ta), V("v_xor_b32", r3, ta, r3),
                         S(f"s_lshl_b32 {s_side}, {s_r}, 5"), V("v_xor_b32", r3, s_side, r3), V("v_xor_b32", r4, 16, r3)])
            ones = VReg("ones", 4)
            kv += [V("v_mov_b32", ones[k], 0x3F803F80) for k in range(4)]
            D1, D2 = VReg("D1", 4), VReg("D2", 4)
            fr = []
            for m in range(4):
                fp, fv = VReg("fp", 4), VReg("fv", 4)
                pb = (PH0 if m < 2 else PH1) + (m & 1) * 8192
                for reg, dst, addr in ((r1, fp[0:2], pb), (r2, fp[2:4], pb + 1024), (r3, fv[0:2], VB + m * 4096),
                                       (r4, fv[2:4], VB + m * 4096 + 512)):
                    fix, imm = self.lds(reg, addr)
                    kv.append(fix + [DSR("ds_read_b64_tr_b16", dst, reg, imm)])
                fr.append((fp, fv))
                if m:
                    kv += [MFMA(16, D1, fr[m - 1][1], fr[m - 1][0], D1 if m > 1 else 0),
                           MFMA(16, D2, ones, fr[m - 1][0], D2 if m > 1 else 0)]
            kv += [MFMA(16, D1, fr[3][1], fr[3][0], D1), MFMA(16, D2, ones, fr[3][0], D2)]
            aa = VReg("aa")
            kv.append(self.field(aa, [(4, 2, 9), (0, 4, 2)]))
            kv.append(f0c)
            kv += [BSTORE("buffer_atomic_add_f32", D1[k], aa, SW, s_tat, 128 * k, "", "kvat") for k in range(4)]
            kv.append([S("s_mov_b64 exec, 0xffff"), BSTORE("buffer_atomic_add_f32", D2[0], aa, SW, s_tat, 2048, "", "kvat"),
                       S("s_mov_b64 exec, -1")])
            assert release_at >= e1 + 1
            self.place(kv, bar(e1), bar(release_at) - 1)
            self.place([gu_base], F[6], F[6])
            tf1 = OPT.get("f1sig", 16)
            self.prebar.setdefault(tf1, []).append("kvat")
            self.place([self.signal(s_f1, 1)], bar(tf1), bar(tf1))
            qacc = accs["q"]
            pq, nh = self.phi_epi(qacc)
            for e in range(2):
                for k in range(4):
                    pq.append(SWAP32(qacc[8 * e + k], qacc[8 * e + 4 + k]))
            qe = OPT.get("qe", 4)
            self.place(pq, F[P2], F[P2 + qe] - 1)
            gu = self.gu_epi(accs["g0"][0], s_hst2, 8, "S2") + self.gu_epi(accs["g0"][1], s_hst2, 9, "S2")
            self.place(gu, F[16], F[18] + OPT.get("gue", 3))
            f1i, f1c = self.poll_cnt(s_f1, 0, 16)
            self.place([f1i], F[P2], F[P2])
            tva = VReg("tva")
            og = [f1c, [V("v_and_b32", tva, 31, lane), V("v_min_u32", tva, 16, tva), V("v_lshlrev_b32", tva, 7, tva)]
                  + self.field(tva, [(5, 1, 5)], init=tva)]
            Traw = {}
            for hh in range(2):
                for e in range(2):
                    Traw[hh, e] = VReg("Traw", 8)
                    for half in range(2):
                        og.append(BLOAD("buffer_load_dwordx4", Traw[hh, e][4 * half:4 * half + 4], tva, SW, s_tld,
                                        hh * 2176 + 64 * e + 16 * half, "sc1"))
            self.place(og, F[P2 + 1], F[P2 + 2] - 1)
            og = []
            Os = []
            for hh in range(2):
                O = VReg("O", 16)
                Os.append(O)
                for e in range(2):
                    T = Traw[hh, e]
                    og += [V("v_cvt_pk_bf16_f32", T[k], T[2 * k], T[2 * k + 1]) for k in range(4)]
                for e in range(2):
                    og.append(MFMA(32, O, Traw[hh, e][0:4], qacc[8 * e + 4 * hh:8 * e + 4 * hh + 4], O if e else 0))
            for hh in range(2):
                O = Os[hh]
                og += [V("v_add_f32", O[8], 0x358637BD, O[8]), V("v_rcp_f32", O[8], O[8])]
                og += [V("v_mul_f32", O[k], O[8], O[k]) for k in range(8)]
                og += [V("v_cvt_pk_bf16_f32", O[k], O[2 * k], O[2 * k + 1]) for k in range(4)]
                og.append([S(f"s_add_u32 {s_side}, {s_hst2}, {(14 + hh) * 8192}"),
                           BSTORE("buffer_store_dwordx4", O[0:4], self.vl16, SW, s_side, 0, "sc1", "S4")])
            self.place(og, F[P2 + qe], F[P2 + qe + 2] - 2)
            ts2, ts4 = OPT.get("s2", 19), P2 + qe + OPT.get("s4", 3)
            self.prebar.setdefault(ts2, []).extend(["S2", "gate"])
            self.place([self.signal(s_f2sig, 1 << 8)], bar(ts2), bar(ts2))
            self.prebar.setdefault(ts4, []).append("S4")
            self.place([self.signal(s_f2sig, 1 << 24)], bar(ts4), bar(ts4))
        else:
            skip = self.label("nof0")
            tz, tz2 = VReg("tz"), VReg("tz2")
            self.place([[V("v_mov_b32", tz, 1), S(f"s_lshl_b32 {s_side}, {s_j}, 2"), V("v_mov_b32", tz2, s_side),
                         S(f"s_or_b32 {s_side}, {s_rb}, {s_w}"), S(f"s_cmp_lg_u32 {s_side}, 0"), S(f"s_cbranch_scc1 {skip}"),
                         GSTORE("global_store_dword", tz2, tz, sDBG, 0, "sc1", counted=False), LABEL(skip)]], bar(0), bar(0))
            self.vgh, self.vuh = VReg("vgh"), VReg("vuh")
            th = VReg("th")
            self.half_setup = [[V("v_lshrrev_b32", th, 2, lane), S(f"s_movk_i32 {s_side}, 3584"),
                                V("v_mul_u32_u24", self.vgh, s_side, th)] + self.field(self.vgh, [(0, 2, 4)], init=self.vgh)
                               + [V("v_xor_b32", self.vuh, 32, self.vgh)] + self.half_srd()]
            tg = min(t_ for t_, l_ in issue_at.items() if ("gh", 0) in l_)
            assert all(it[0] not in ("g0", "g1") for t_, l_ in issue_at.items() if t_ >= tg for it in l_)
            self.place(self.half_setup, bar(tg) - 1, bar(tg) - 1)
            g = self.field(bgh, [(4, 1, 10), (5, 1, 9), (2, 2, 6), (4, 1, 5), (0, 2, 3)])
            self.place([g + [S(f"s_lshl_b32 {s_side}, {s_c}, 5"), V("v_xor_b32", bgh, s_side, bgh)]], F[14], F[14])
            gu = self.gu_epi(accs["g0"][0], s_hst2, 0, "S1") + self.gu_epi(accs["g0"][1], s_hst2, 1, "S1")
            self.place(gu, F[8], F[11] - 1)
            f0i, f0c = self.poll_f0()
            self.place([f0i], F[10], F[10])
            self.place([f0c], F[12], F[12])
            self.prebar.setdefault(12, []).append("S1")
            self.place([self.signal(s_f2sig, 1)], bar(12), bar(12))
            gu = self.gu_epi(accs["g1"][0], s_hst2, 4, "S2") + self.gu_epi(accs["g1"][1], s_hst2, 5, "S2")
            self.place(gu, F[16], F[18] + OPT.get("gue", 3))
            ts2 = OPT.get("s2", 19)
            self.prebar.setdefault(ts2, []).extend(["S2", "gate"])
            self.place([self.signal(s_f2sig, 1 << 8)], bar(ts2), bar(ts2))
            gu = self.gu_epi(accs["gh"], s_hst1, 12, "S3")
            self.place(gu, F[P2], F[P2 + 1] - 1)
            ts3 = P2 + OPT.get("s3b", 2)
            self.prebar.setdefault(ts3, []).append("S3")
            self.place([self.signal(s_f2sig, 1 << 16)], bar(ts3), bar(ts3))
        if OPT.get("touch", 0) & 4:
            for key, tt in zip("cdefg", (OPT.get("tc", 1), OPT.get("td", 2), OPT.get("te", 4), OPT.get("tf", 5), OPT.get("tg", 6))):
                g = self.touch(key)
                if g:
                    self.place([g], F[tt], F[tt])
        self.place([[KEEP(self.vdummy)]], F[12], F[12])
        self.place(w2base, F[18], F[18])
        c2, c3, c4 = P2 + OPT.get("c2", 2), P2 + OPT.get("c3", 8), P2 + OPT.get("c4", 11)
        sets = [(0, 8, range(0, 4), 17, 18), (8, 16, range(4, 12), c2 - 1, c2), (16, 8, range(12, 14), c3 - 1, c3),
                (24, 8, range(14, 18), c4 - 1, c4)]
        for shift, want, chs, t_issue, t_chk in sets:
            pi, pc = self.poll_cnt(s_f2wait, shift, want)
            self.place([pi], F[t_issue], F[t_issue])
            self.place([pc], F[t_chk], F[t_chk])
            n = len(chs)
            self.place([hload(ch) for ch in chs], F[t_chk] + 1, F[t_chk] + 2 * n)
        gv, ga2 = VReg("gv"), VReg("ga2")
        self.place([[S(f"s_lshl_b32 {s_side}, {s_rb2}, 1"), S(f"s_add_u32 {s_side}, {s_side}, {s_c}"),
                     S(f"s_lshl_b32 {s_side}, {s_side}, 7"), S(f"s_add_u32 {s_side}, {s_side}, {WS_G}")]
                    + self.field(ga2, [(0, 5, 2)]) + [BLOAD("buffer_load_dword", gv, ga2, SW, s_side, 0, "sc1")]],
                   F[P2 + 10] + 1, F[P2 + 10] + 1)
        og_ = VReg("omg")
        g = [V("v_sub_f32", og_, 1.0, gv)]
        for nt in range(2):
            g += [V("v_mul_f32", accH[nt][k], og_, accH[nt][k]) for k in range(16)]
        self.place(g, F[P2 + 15], F[P2 + 17] - 1)

        last = slot_of[("w2", 17)]
        RB = 0 if last >= 5 else 163840 - 69632
        assert not (RB <= last * SLOT < RB + 69632) and not (RB < (last + 1) * SLOT <= RB + 69632)
        T = self.tail
        wa_, ra_, oa_ = VReg("redw"), VReg("redr"), VReg("outa")
        tr = VReg("tr")
        setup = [S(f"s_mul_i32 {s_side}, {s_w}, 8704"), S(f"s_add_u32 {s_side}, {s_side}, {RB}"),
                 V("v_and_b32", tr, 31, lane), S(f"s_movk_i32 {s_t2}, 272"), V("v_mul_u32_u24", wa_, s_t2, tr),
                 V("v_add_u32", wa_, s_side, wa_)] + self.field(wa_, [(5, 1, 4)], init=wa_)
        setup += [S(f"s_mul_i32 {s_side}, {s_c}, {4 * 8704}"), S(f"s_mul_i32 {s_t1}, {s_r}, {8 * 272}"),
                  S(f"s_add_u32 {s_side}, {s_side}, {s_t1}"), S(f"s_add_u32 {s_side}, {s_side}, {RB}"),
                  V("v_lshrrev_b32", tr, 4, lane), V("v_mul_u32_u24", ra_, s_t2, tr), V("v_add_u32", ra_, s_side, ra_)]
        setup += self.field(ra_, [(0, 4, 4)], init=ra_)
        setup += [S(f"s_lshl_b32 {s_side}, {s_w}, 13")] + self.field(oa_, [(4, 2, 10), (0, 4, 3)], init=s_side)
        self.place([setup], F[P2 + 16], F[P2 + 16])
        T.append("STAMP")
        for nt in range(2):
            for qq in range(4):
                T += [V("v_fmac_f32", accH[nt][4 * qq + k], gv, accO[nt][4 * qq + k]) for k in range(4)]
                T.append(DSW("ds_write_b128", wa_, accH[nt][4 * qq:4 * qq + 4], 128 * nt + 32 * qq))
        T += [WAITLGKM(), BAR()]
        parts = {}
        for i in range(2):
            for kq in range(4):
                parts[i, kq] = VReg("part", 4)
                T.append(DSR("ds_read_b128", parts[i, kq], ra_, kq * 8704 + i * 4 * 272))
        for i in range(2):
            for k in range(4):
                T.append(V("v_add_f32", parts[i, 0][k], parts[i, 0][k], parts[i, 1][k]))
                T.append(V("v_add_f32", parts[i, 2][k], parts[i, 2][k], parts[i, 3][k]))
            for k in range(4):
                T.append(V("v_add_f32", parts[i, 0][k], parts[i, 0][k], parts[i, 2][k]))
            T += [V("v_cvt_pk_bf16_f32", parts[i, 0][0], parts[i, 0][0], parts[i, 0][1]),
                  V("v_cvt_pk_bf16_f32", parts[i, 0][1], parts[i, 0][2], parts[i, 0][3])]
            if i:
                T.append(S(f"s_movk_i32 {s_side}, 4096"))
            T.append(BSTORE("buffer_store_dwordx2", parts[i, 0][0:2], oa_, SOUT, s_side if i else 0))
        if OPT["stamp"]:
            T += [WAITALL(), "STAMP"]
            sa = VReg("sa")
            T += [S(f"s_lshl_b32 {s_side}, s2, 3"), S(f"s_add_u32 {s_side}, {s_side}, {s_w}"), S(f"s_lshl_b32 {s_side}, {s_side}, 8"),
                  S(f"s_add_u32 {s_side}, {s_side}, {WS_STAMP}"), V("v_lshlrev_b32", sa, 2, lane),
                  BSTORE("buffer_store_dword", self.vst, sa, SW, s_side)]

        out = list(P)
        out += [WAITVM(*steps[0]), BAR()] + self.stamp_issue()
        for m in range(D):
            out += M[m][0]
        step_at = {F[tt + 1] - D: tt for tt in range(len(steps) - 1)}
        pend = []
        for m in range(len(M)):
            if m in step_at:
                tt = step_at[m]
                out.append(COMMENT(f"---- end of step {tt}"))
                out += [WAITLGKM()] + self.stamp_collect()
                out += [WAITVM(*(steps[tt + 1] + self.prebar.get(tt, []))), BAR()] + self.stamp_issue()
                pend = [self.dma_item(it, slot_of[it]) for it in issue_at[tt]]
            if m + D < len(M):
                out += M[m + D][0]
            out.append(M[m][1])
            if pend:
                out += pend.pop(0)
            for g in self.side.get(m, []):
                out += g
        for x in T:
            if x == "STAMP":
                out += ([WAITLGKM()] + self.stamp_collect() if OPT["stamp"] else []) + self.stamp()
            else:
                out.append(x)
        out.append(S("s_endpgm"))
        return out

    def text(self):
        prog = self.build()
        prog, peak = finish(prog, 256)
        lines = [i.text() for i in prog]
        for slow, back, fn in self.slow:
            loop = slow + "_l"
            lines += [f"{slow}:", f"    s_mov_b32 {s_spin}, {OPT['spin']}", f"{loop}:"]
            lines += ["    " + x for x in fn()]
            lines += [f"    s_cbranch_scc1 {back}", "    s_sleep 1", f"    s_sub_u32 {s_spin}, {s_spin}, 1",
                      f"    s_cmp_lg_u32 {s_spin}, 0", f"    s_cbranch_scc1 {loop}", f"    s_branch {back}"]
        n = {}
        for i in prog:
            n[i.kind] = n.get(i.kind, 0) + 1
        print(self.typ, "peak vgpr", peak, n, file=sys.stderr)
        print(self.typ, "issue_at", {k: [f"{a}{b}@{self.slot_of[(a, b)]}" for a, b in v] for k, v in self.issue_at.items() if v},
              file=sys.stderr)
        return "\n".join(lines)


def main():
    ref = open(f"cdna_kernels/{NAME}.s.ref").read().splitlines()
    head = [l for l in ref if l.startswith(";") and "@launch" not in l]
    o = head + ["; @launch grid=(256,1,1) block=(512,1,1) lds=163840",
                '.amdgcn_target "amdgcn-amd-amdhsa--gfx950"', ".text", f".globl {NAME}_kernel", ".p2align 8",
                f".type {NAME}_kernel,@function", f"{NAME}_kernel:"]
    if OPT["stamp"]:
        o.append("    " + ("s_memrealtime" if OPT["stamp"] == 1 else "s_memtime") + " s[96:97]")
    o += ["    " + x for x in f"""s_cmp_ge_u32 s2, 256
s_cbranch_scc1 L_exit
s_load_dwordx16 s[4:19], s[0:1], 0
s_load_dwordx8 s[20:27], s[0:1], 64
s_and_b32 {s_t0}, s2, 7
s_lshr_b32 {s_t1}, s2, 3
s_and_b32 {s_rb}, {s_t0}, 1
s_lshl_b32 {s_rb}, {s_rb}, 3
s_and_b32 {s_t2}, {s_t1}, 7
s_add_u32 {s_rb}, {s_rb}, {s_t2}
s_lshr_b32 {s_cg}, {s_t0}, 1
s_lshl_b32 {s_cg}, {s_cg}, 2
s_lshr_b32 {s_t2}, {s_t1}, 3
s_add_u32 {s_cg}, {s_cg}, {s_t2}
s_lshr_b32 {s_j}, {s_cg}, 1
s_lshl_b32 {s_rb2}, {s_t0}, 2
s_and_b32 {s_t2}, {s_t1}, 3
s_add_u32 {s_rb2}, {s_rb2}, {s_t2}
s_lshr_b32 {s_cb}, {s_t1}, 2
s_bitcmp1_b32 {s_cg}, 0
s_cbranch_scc1 L_typeB""".splitlines()]
    o.append(Prog("A").text())
    o.append("L_exit:\n    s_endpgm")
    o.append(".p2align 6\nL_typeB:")
    o.append(Prog("B").text())
    o.append(f""".section .rodata,"a"
.p2align 6
.amdhsa_kernel {NAME}_kernel
  .amdhsa_next_free_vgpr 256
  .amdhsa_next_free_sgpr 102
  .amdhsa_accum_offset 256
  .amdhsa_group_segment_fixed_size 0
  .amdhsa_kernarg_size 96
  .amdhsa_user_sgpr_count 2
  .amdhsa_user_sgpr_kernarg_segment_ptr 1
  .amdhsa_system_sgpr_workgroup_id_x 1
.end_amdhsa_kernel""")
    open(sys.argv[1], "w").write("\n".join(o) + "\n")


main()
```

```python
import os, sys
sys.path.insert(0, os.path.dirname(os.path.abspath(__file__)))
from asmfw import *

NAME = "gated_mix__linear_kernel_hedgehog__glu_gated_glu__prompt"
OPT = dict(stamp=0, D=2, nslot=10, spin=1 << 22)
for a in sys.argv[2:]:
    k, v = a.split("=")
    OPT[k] = int(v)
D = OPT["D"]
SLOT = 16384

WS_H = 0
WS_Z = 0x900000
ZBLK = 9216
WS_G = 0x920000
WS_STAMP = 0x930000
WS_SIZE = 0xA00000

sX, sQKV, sPHI, sWO, sWG, sWU, sWD = "s[4:5]", "s[6:7]", "s[8:9]", "s[10:11]", "s[14:15]", "s[16:17]", "s[18:19]"
sGW, sOUTP, sDBG, sWS = "s[20:21]", "s[22:23]", "s[24:25]", "s[26:27]"
SX, SQ, SG, SU, SD, SO, SW, SOUT = ("s[28:31]", "s[32:35]", "s[36:39]", "s[40:43]", "s[44:47]", "s[48:51]",
                                    "s[52:55]", "s[56:59]")
s_w, s_r, s_c, s_j, s_rb, s_rb2, s_cb, s_cg = "s60", "s61", "s62", "s63", "s64", "s65", "s66", "s67"
s_w2048, s_u, s_h, s_R1, s_R3, s_R3h, s_L, s_nL = "s68", "s69", "s70", "s71", "s72", "s73", "s74", "s75"
s_so0, s_so1, s_side = "s76", "s77", "s78"
s_hst2, s_hst1, s_hld, s_tat, s_tld, s_f2sig, s_f2wait, s_f1 = "s79", "s80", "s81", "s82", "s83", "s84", "s85", "s86"
s_t0, s_t1, s_t2 = "s87", "s88", "s89"
s_mask = "s[90:91]"
s_spin, s_ph = "s92", "s93"
s_ts = "s[94:95]"
s_rot, s_roth, s_rot2 = "s100", "s101", "s3"


def srd_lo(s):
    return int(s[2:s.index(":")])


class Prog:
    def __init__(self, typ):
        self.typ = typ
        self.pro = []
        self.main = []
        self.first = {}
        self.side = {}
        self.prebar = {}
        self.tail = []
        self.slow = []
        self.v0 = VReg("v0", fixed=0)
        self.nstamp = 0
        self.vst = VReg("stamps", long=True) if OPT["stamp"] else None
        self.nlab = 0

    def label(self, n):
        self.nlab += 1
        return f"L{self.typ}_{n}_{self.nlab}"

    def stamp(self):
        if not OPT["stamp"]:
            return []
        return [WAITLGKM()] + self.stamp_issue() + self.stamp_collect()

    def stamp_issue(self):
        if not OPT["stamp"]:
            return []
        self.stamp_pending = True
        return [S(("s_memrealtime " if OPT["stamp"] == 1 else "s_memtime ") + s_ts)]

    def stamp_collect(self):
        if not OPT["stamp"] or not getattr(self, "stamp_pending", False):
            return []
        self.stamp_pending = False
        k = self.nstamp
        self.nstamp += 1
        i = Inst("v_writelane_b32", [self.vst.ref(), "s94", k], [self.vst], [self.vst], "valu")
        return [S("s_waitcnt lgkmcnt(0)"), i]

    def place(self, groups, m0, m1):
        groups = [g if isinstance(g, list) else [g] for g in groups]
        tot = sum(sum(i.cost for i in g) for g in groups) or 1.0
        n = m1 - m0 + 1
        acc = 0.0
        for g in groups:
            m = m0 + min(n - 1, int(acc / tot * n))
            self.side.setdefault(m, []).append(g)
            acc += sum(i.cost for i in g)

    def lds(self, base, addr):
        fix = []
        if not (0 <= addr - base.bias < 65536):
            nb = addr & ~0xFFFF
            fix.append(V("v_add_u32", base, nb - base.bias, base))
            base.bias = nb
        return fix, addr - base.bias

    def trfrag(self, base, addr, step2):
        f = VReg("frag", 4)
        fix, imm = self.lds(base, addr)
        assert imm + step2 < 65536
        return f, fix + [DSR("ds_read_b64_tr_b16", f[0:2], base, imm), DSR("ds_read_b64_tr_b16", f[2:4], base, imm + step2)]

    def field(self, dst, fields, init=None):
        out = []
        t = VReg("ft")
        cur = init
        for lo, width, pos in fields:
            out.append(V("v_bfe_u32", t, self.lane, lo, width))
            if cur is None:
                out.append(V("v_lshlrev_b32", dst, pos, t))
            else:
                out.append(V("v_lshl_add_u32", dst, t, pos, cur))
            cur = dst
        return out

    def srd(self, s, ptr, shift, total, minus=0):
        a, p = srd_lo(s), srd_lo(ptr)
        o = []
        if shift is None:
            o += [S(f"s_mov_b32 s{a}, s{p}"), S(f"s_mov_b32 s{a+1}, s{p+1}"), S(f"s_mov_b32 s{a+2}, {total}")]
        else:
            o += [S(f"s_add_u32 s{a}, s{p}, {shift}"), S(f"s_addc_u32 s{a+1}, s{p+1}, 0"),
                  S(f"s_sub_u32 s{a+2}, {total + minus}, {shift}")]
            if minus:
                o += [S(f"s_sub_u32 s{a}, s{a}, {minus}"), S(f"s_subb_u32 s{a+1}, s{a+1}, 0")]
        o.append(S(f"s_mov_b32 s{a+3}, 0x20000"))
        return o

    def poll_cnt(self, soff, shift, want):
        vp = VReg("poll")
        issue = [BLOAD("buffer_load_dword", vp, self.vzero, SW, soff, 0, "sc1")]
        slow, back = self.label("slow"), self.label("back")
        chk = [RFL(s_t0, vp), S(f"s_bfe_u32 {s_t0}, {s_t0}, {hex((8 << 16) | shift)}"),
               S(f"s_cmp_eq_u32 {s_t0}, {want}"), S(f"s_cbranch_scc0 {slow}"), LABEL(back), KEEP(vp, self.vzero)]
        self.slow.append((slow, back, lambda: [
            f"buffer_load_dword {vp.ref().text()}, {self.vzero.ref().text()}, {SW}, {soff} offen sc1",
            "s_waitcnt vmcnt(0)", f"v_readfirstlane_b32 {s_t0}, {vp.ref().text()}", "s_nop 1",
            f"s_bfe_u32 {s_t0}, {s_t0}, {hex((8 << 16) | shift)}", f"s_cmp_eq_u32 {s_t0}, {want}"]))
        return issue, chk

    def poll_f0(self):
        vp, va = VReg("poll"), VReg("polla")
        issue = self.field(va, [(0, 3, 2)]) + [GLOAD("global_load_dword", vp, va, sDBG, 0, "sc1")]
        slow, back = self.label("slow"), self.label("back")
        chk = [VCMP("v_cmp_ne_u32", "vcc", 0, vp), S("s_cmp_eq_u64 vcc, -1"), S(f"s_cbranch_scc0 {slow}"),
               LABEL(back), KEEP(vp, va)]
        self.slow.append((slow, back, lambda: [
            f"global_load_dword {vp.ref().text()}, {va.ref().text()}, {sDBG} sc1", "s_waitcnt vmcnt(0)",
            f"v_cmp_ne_u32 vcc, 0, {vp.ref().text()}", "s_nop 1", "s_cmp_eq_u64 vcc, -1"]))
        return issue, chk

    def signal(self, soff, val):
        skip = self.label("nosig")
        t = VReg("sigv")
        a = BSTORE("buffer_atomic_add", t, self.vzero, SW, soff, counted=False)
        return [V("v_mov_b32", t, val), S(f"s_cmp_lg_u32 {s_w}, 0"), S(f"s_cbranch_scc1 {skip}"),
                S("s_mov_b64 exec, 1"), a, S("s_mov_b64 exec, -1"), LABEL(skip)]

    def rot(self, dst, reg, i, mask, mul, add=0, base=None):
        if not OPT.get("rot", 1):
            v = (i & mask) * mul + add
            return [S(f"s_add_u32 {dst}, {base}, {v}") if base else S(f"s_mov_b32 {dst}, {v}")]
        o = [S(f"s_add_u32 {dst}, {reg}, {i}"), S(f"s_and_b32 {dst}, {dst}, {mask}"), S(f"s_mul_i32 {dst}, {dst}, {mul}")]
        if add:
            o.append(S(f"s_add_u32 {dst}, {dst}, {add & 0xFFFFFFFF}"))
        if base:
            o.append(S(f"s_add_u32 {dst}, {dst}, {base}"))
        return o

    def dma_item(self, it, slot):
        kind, i = it
        tag = it
        o = [S(f"s_add_u32 m0, {s_w2048}, {slot * SLOT}")]
        if kind == "x":
            o += self.rot(s_so0, s_rot, i, 7, 128) + [DMA(self.vx0, SX, s_so0, 0, tag), DMA(self.vx1, SX, s_so0, 1024, tag)]
        elif kind == "kv":
            o += self.rot(s_so0, s_rot, i, 7, 64 * 3072, 1024) + [DMA(self.vkv, SQ, s_so0, 0, tag),
                                                                  DMA(self.vkv, SQ, s_so0, 1024, tag)]
        elif kind == "q":
            o += self.rot(s_so0, s_rot, 2 * i, 7, 64 * 3072) + [DMA(self.vkv, SQ, s_so0, 0, tag)]
            o += [S(f"s_add_u32 m0, {s_w2048}, {slot * SLOT + 1024}")]
            o += self.rot(s_so1, s_rot, 2 * i + 1, 7, 64 * 3072) + [DMA(self.vkv, SQ, s_so1, 0, tag)]
        elif kind in ("g0", "g1"):
            u = int(kind[1])
            o += self.rot(s_so0, s_rot, i, 7, 64 * 3584, 128 * u, s_u if self.typ == "B" else None)
            o += [DMA(self.vg, SG, s_so0, 0, tag), DMA(self.vu, SU, s_so0, 1024, tag)]
        elif kind == "gh":
            assert OPT.get("rot", 1)
            o += self.rot(s_so0, s_roth, 2 * i, 7, 64 * 3584, 0, s_h)
            o += [DMA(self.vgh, SG, s_so0, 0, tag), DMA(self.vuh, SU, s_so0, 1024, tag)]
        elif kind == "w2":
            if i < 8:
                base, srd, rows, k, mask = s_R1, SD, 64 * (i >> 2), i & 3, 3
            elif i < 12:
                base, srd, rows, k, mask = s_R3, SD, 0, i - 8, 3
            elif i < 14:
                base, srd, rows, k, mask = s_R3h, SD, 0, i - 12, 1
            else:
                base, srd, rows, k, mask = s_R3, SO, 0, i - 14, 3
            o += self.rot(s_so0, s_rot2, k, mask, 16384, rows * 1024, base)
            o += [DMA(self.vw2a, srd, s_so0, 0, tag), DMA(self.vw2b, srd, s_so0, 1024, tag)]
        return o

    def half_srd(self):
        d = s_side
        o = [S(f"s_lshl_b32 {d}, {s_r}, 4"), S(f"s_lshl_b32 {s_t2}, {s_w}, 3"), S(f"s_sub_i32 {d}, {d}, {s_t2}"),
             S(f"s_mul_i32 {d}, {d}, 3584"), S(f"s_ashr_i32 {s_t2}, {d}, 31")]
        for srd in (SG, SU):
            a = srd_lo(srd)
            o += [S(f"s_add_u32 s{a}, s{a}, {d}"), S(f"s_addc_u32 s{a+1}, s{a+1}, {s_t2}"), S(f"s_sub_u32 s{a+2}, s{a+2}, {d}")]
        return o

    def touch(self, which):
        A = self.typ == "A"
        a, col, off, pit, sh, lst = s_side, s_t2, s_t0, s_t1, "s96", "s97"
        ptr = "s[98:99]"

        def unit(p, pitch, extra):
            return [f"s_mov_b64 {ptr}, {p}", f"s_movk_i32 {pit}, {pitch}", f"s_mul_i32 {off}, {a}, {64 * pitch}",
                    f"s_add_u32 {off}, {off}, {extra}", f"s_add_u32 {off}, {off}, {col}", f"s_mov_b32 {sh}, 0",
                    f"s_mov_b32 {lst}, 0"]

        def wch(p, pitch, extra, c0):
            return [f"s_mov_b64 {ptr}, {p}", f"s_mov_b32 {pit}, {64 * pitch}", f"s_mul_i32 {off}, {a}, {8 * pitch}",
                    f"s_add_u32 {off}, {off}, {extra + c0 * 64 * pitch}", f"s_add_u32 {off}, {off}, {col}",
                    f"s_mov_b32 {sh}, 3", f"s_movk_i32 {lst}, {pitch}", "s_mov_b32 exec_hi, 0"]

        def xt(c0):
            return [f"s_mov_b64 {ptr}, {sX}", f"s_movk_i32 {pit}, 1024", f"s_and_b32 {off}, {s_cg}, 3",
                    f"s_lshl_b32 {off}, {off}, 15", f"s_lshl_b32 {sh}, {s_rb}, 17", f"s_add_u32 {off}, {off}, {sh}",
                    f"s_add_u32 {off}, {off}, {c0 * 128}", f"s_mov_b32 {sh}, 1", f"s_movk_i32 {lst}, 128"]
        wd = [f"s_mov_b64 {ptr}, {sWD}", f"s_movk_i32 {pit}, 1024", f"s_mul_i32 {off}, s2, 7168",
              f"s_mov_b32 {sh}, 3", f"s_movk_i32 {lst}, 128", "s_mov_b32 exec_hi, 0xffffff"]
        wo = [f"s_mov_b64 {ptr}, {sWO}", f"s_movk_i32 {pit}, 1024", f"s_lshl_b32 {off}, s2, 11",
              f"s_mov_b32 {sh}, 3", f"s_movk_i32 {lst}, 128", "s_mov_b64 exec, 0xffff"]
        if A:
            colA = [f"s_lshl_b32 {col}, {s_j}, 7"]
            tab = {"a": [xt(0), xt(2), colA + wch(sQKV, 3072, 1024, 0), colA + wch(sQKV, 3072, 2048, 0)],
                   "b": [xt(4), xt(6), colA + wch(sQKV, 3072, 1024, 4), colA + wch(sQKV, 3072, 2048, 4)],
                   "c": [colA + unit(sWG, 3584, 0)], "d": [colA + unit(sWU, 3584, 0)],
                   "e": [colA + unit(sQKV, 3072, 0)], "f": [], "g": [wd, wo]}
        else:
            col0 = [f"s_lshr_b32 {col}, {s_j}, 1", f"s_mul_i32 {col}, {col}, 640", f"s_add_u32 {col}, {col}, 1024"]
            colB = col0 + [f"s_and_b32 {off}, {s_j}, 1", f"s_mul_i32 {off}, {off}, 384", f"s_add_u32 {col}, {col}, {off}"]
            tab = {"a": [xt(0), xt(2), colB + wch(sWG, 3584, 0, 0), colB + wch(sWU, 3584, 0, 0)],
                   "b": [xt(4), xt(6), colB + wch(sWG, 3584, 0, 4), colB + wch(sWU, 3584, 0, 4)],
                   "c": [colB + unit(sWG, 3584, 128)], "d": [colB + unit(sWU, 3584, 128)],
                   "e": [col0 + unit(sWG, 3584, 256)], "f": [col0 + unit(sWU, 3584, 256)], "g": [wd, wo]}
        blocks = tab[which]
        if not blocks:
            return []
        join, done = self.label("tj"), self.label("td")
        txt = [f"s_bfe_u32 {a}, s2, 0x30003"]
        labs = [self.label("tb") for _ in blocks]
        for k in range(len(blocks)):
            txt += [f"s_cmp_eq_u32 {s_w}, {k}", f"s_cbranch_scc1 {labs[k]}"]
        txt.append(f"s_branch {done}")
        out = [S(x, cost=0.1) for x in txt]
        for k in range(len(blocks)):
            out.append(LABEL(labs[k]))
            out += [S(x, cost=0.1) for x in blocks[k]]
            if k != len(blocks) - 1:
                out.append(S(f"s_branch {join}"))
        out.append(LABEL(join))
        vt, vr = VReg("vt"), VReg("vr")
        ld = GLOAD("global_load_dword", self.vdummy, vt, ptr, 0, "nt" if OPT.get("tnt", 0) and which != "g" else "", counted=False)
        ld.defs = []
        out += [V("v_lshrrev_b32", vr, sh, self.lane), V("v_lshlrev_b32", vt, sh, vr), V("v_sub_u32", vt, self.lane, vt),
                V("v_mul_u32_u24", vt, lst, vt), V("v_mad_u32_u24", vt, vr, pit, vt), V("v_add_u32", vt, off, vt),
                ld, S("s_mov_b64 exec, -1"), LABEL(done)]
        return out

    def gu_epi(self, acc, sbase, ch, tag):
        g = []
        for k in range(8):
            g.append(V("v_mul_f32", acc[k], s_nL, acc[k]))
        for k in range(8):
            g.append(V("v_exp_f32", acc[k], acc[k]))
        for k in range(8):
            g.append(V("v_add_f32", acc[k], 1.0, acc[k]))
        for k in range(8):
            g.append(V("v_rcp_f32", acc[k], acc[k]))
        for k in range(8):
            g.append(V("v_mul_f32", acc[8 + k], acc[k], acc[8 + k]))
        for k in range(4):
            g.append(V("v_cvt_pk_bf16_f32", acc[k], acc[8 + 2 * k], acc[9 + 2 * k]))
        g.append([S(f"s_add_u32 {s_side}, {sbase}, {ch * 8192}"),
                  BSTORE("buffer_store_dwordx4", acc[0:4], self.vl16, SW, s_side, 0, "sc1", tag)])
        return g

    def phi_epi(self, acc):
        g = []
        kb, P = VReg("kb", 8), VReg("P", 16)
        for k in range(8):
            g.append(V("v_cvt_pk_bf16_f32", kb[k], acc[2 * k], acc[2 * k + 1]))
        g.append(MFMA(32, P, self.A0, kb[0:4], 0))
        g.append(MFMA(32, P, self.A1, kb[4:8], P))
        n_head = len(g)
        mx, mn = VReg("mx"), VReg("mn")
        g.append(V("v_max3_f32", mx, P[0], P[1], P[2]))
        g.append(V("v_min3_f32", mn, P[0], P[1], P[2]))
        for k in range(3, 15, 2):
            g.append(V("v_max3_f32", mx, mx, P[k], P[k + 1]))
            g.append(V("v_min3_f32", mn, mn, P[k], P[k + 1]))
        g.append(V("v_max_f32", mx, mx, P[15]))
        g.append(V("v_min_f32", mn, mn, P[15]))
        g.append(V("v_mul_f32", mx, s_nL, mx))
        g.append(V("v_mul_f32", mn, s_L, mn))
        for k in range(16):
            g.append(V("v_fma_f32", acc[k], P[k], s_L, mx))
            g.append(V("v_fma_f32", P[k], P[k], s_nL, mn))
            if k:
                g.append(V("v_exp_f32", acc[k - 1], acc[k - 1]))
                g.append(V("v_exp_f32", P[k - 1], P[k - 1]))
        g.append(V("v_exp_f32", acc[15], acc[15]))
        g.append(V("v_exp_f32", P[15], P[15]))
        sp, sn = VReg("sp"), VReg("sn")
        g.append(V("v_add_f32", sp, acc[0], acc[1]))
        g.append(V("v_add_f32", sn, P[0], P[1]))
        for k in range(2, 16):
            g.append(V("v_add_f32", sp, sp, acc[k]))
            g.append(V("v_add_f32", sn, sn, P[k]))
        g.append(V("v_rcp_f32", sp, sp))
        g.append(V("v_rcp_f32", sn, sn))
        for k in range(8):
            g.append(V("v_mul_f32", acc[2 * k], sp, acc[2 * k]))
            g.append(V("v_mul_f32", acc[2 * k + 1], sp, acc[2 * k + 1]))
            g.append(V("v_cvt_pk_bf16_f32", acc[k], acc[2 * k], acc[2 * k + 1]))
        for k in range(8):
            g.append(V("v_mul_f32", P[2 * k], sn, P[2 * k]))
            g.append(V("v_mul_f32", P[2 * k + 1], sn, P[2 * k + 1]))
            g.append(V("v_cvt_pk_bf16_f32", acc[8 + k], P[2 * k], P[2 * k + 1]))
        return g, n_head

    def build(self):
        A = self.typ == "A"
        P = self.pro
        self.lane = lane = VReg("lane", long=True)
        t = VReg("t")
        P += [V("v_lshrrev_b32", t, 6, self.v0), V("v_and_b32", lane, 63, self.v0), RFL(s_w, t)]
        if OPT["stamp"]:
            P += [V("v_mov_b32", self.vst, 0)]
        self.vx0, self.vx1 = VReg("vx0"), VReg("vx1")
        q, p, q1 = VReg("q"), VReg("p"), VReg("q1")
        P += [V("v_lshrrev_b32", q, 3, lane), V("v_and_b32", p, 7, lane), V("v_lshrrev_b32", q1, 4, lane),
              V("v_xor_b32", t, p, q1), V("v_lshlrev_b32", t, 4, t), V("v_lshl_add_u32", self.vx0, q, 10, t),
              V("v_xor_b32", self.vx1, 64, self.vx0), V("v_add_u32", self.vx1, 7168, self.vx1),
              V("v_and_b32", q1, 1, q1)]
        self.vg, self.vu = VReg("vg", long=True), VReg("vu", long=True)
        t2 = VReg("t2")
        P += [S(f"s_movk_i32 {s_t0}, 3584"), V("v_lshlrev_b32", t, 1, q1), V("v_xor_b32", t, p, t),
              V("v_lshlrev_b32", t, 4, t), V("v_mad_u32_u24", self.vg, q, s_t0, t), V("v_xor_b32", self.vu, 64, self.vg)]
        self.vw2a, self.vw2b = VReg("vw2a", long=True), VReg("vw2b", long=True)
        P += [V("v_lshlrev_b32", t2, 2, q1), V("v_xor_b32", t2, p, t2), V("v_lshlrev_b32", t2, 4, t2),
              V("v_lshl_add_u32", self.vw2a, q, 10, t2), V("v_add_u32", self.vw2b, 7168, self.vw2a)]
        if A:
            self.vkv = VReg("vkv", long=True)
            P += [S(f"s_movk_i32 {s_t1}, 3072"), V("v_mad_u32_u24", self.vkv, q, s_t1, t2)]
        P += [S(f"s_and_b32 {s_r}, {s_w}, 3"), S(f"s_lshr_b32 {s_c}, {s_w}, 2"), S(f"s_lshl_b32 {s_w2048}, {s_w}, 11"),
              S(f"s_mul_i32 {s_t2}, {s_w}, {8 * 3584}")]
        P += [S(f"s_bfe_u32 {s_rot}, s2, 0x30003"), S(f"s_lshr_b32 {s_t0}, s2, 6"), S(f"s_lshl_b32 {s_t0}, {s_t0}, 1"),
              S(f"s_add_u32 {s_rot}, {s_rot}, {s_t0}"), S(f"s_add_u32 {s_roth}, {s_rot}, {s_c}"),
              S(f"s_add_u32 {s_rot2}, {s_cb}, {s_rb2}")]
        if not OPT.get("rot1", 1):
            P += [S(f"s_mov_b32 {s_rot}, 0"), S(f"s_mov_b32 {s_roth}, {s_c}")]
        if not OPT.get("rot2", 1):
            P += [S(f"s_mov_b32 {s_rot2}, 0")]
        P += [S("s_waitcnt lgkmcnt(0)")]
        if OPT["stamp"]:
            P.append(Inst("v_writelane_b32", [self.vst.ref(), "s96", 0], [self.vst], [self.vst], "valu"))
            self.nstamp = 1
            P += self.stamp()
        self.vdummy = VReg("dummy", long=True)
        P.append(V("v_mov_b32", self.vdummy, 0))
        if OPT.get("touch", 0) & 1:
            P += self.touch("a")
        P += [S(f"s_mul_i32 {s_t2}, {s_w}, {8 * 3584}")]
        P += [S(f"s_lshl_b32 {s_t0}, {s_rb}, 17"), S(f"s_lshl_b32 {s_t1}, {s_w}, 14"), S(f"s_add_u32 {s_t0}, {s_t0}, {s_t1}")]
        P += self.srd(SX, sX, s_t0, 2097152)
        if A:
            P += [S(f"s_mul_i32 {s_t0}, {s_w}, {8 * 3072}"), S(f"s_lshl_b32 {s_t1}, {s_j}, 7"),
                  S(f"s_add_u32 {s_t0}, {s_t0}, {s_t1}")]
            P += self.srd(SQ, sQKV, s_t0, 1572864)
            gsetup = [S(f"s_lshl_b32 {s_t1}, {s_j}, 7"), S(f"s_add_u32 {s_t0}, {s_t2}, {s_t1}"), S(f"s_mov_b32 {s_u}, 0")]
        else:
            gsetup = [S(f"s_lshr_b32 {s_t1}, {s_j}, 1"), S(f"s_mul_i32 {s_t1}, {s_t1}, 640"),
                      S(f"s_add_u32 {s_t0}, {s_t2}, {s_t1}"), S(f"s_add_u32 {s_t0}, {s_t0}, 1024"),
                      S(f"s_and_b32 {s_t1}, {s_j}, 1"), S(f"s_mul_i32 {s_u}, {s_t1}, 384"),
                      S(f"s_lshl_b32 {s_h}, {s_t1}, 6"), S(f"s_add_u32 {s_h}, {s_h}, 256")]
        gsetup += self.srd(SG, sWG, s_t0, 1835008) + self.srd(SU, sWU, s_t0, 1835008, minus=1024)
        if not A:
            P += gsetup

        steps = []
        for i in range(8):
            steps.append([("x", i), ("kv" if A else "g0", i)])
        if A:
            steps += [[("g0", i)] for i in range(8)] + [[("q", i)] for i in range(4)]
        else:
            steps += [[("g1", i)] for i in range(8)] + [[("gh", i)] for i in range(4)]
        steps += [[("w2", i)] for i in range(18)]
        items = [it for s in steps for it in s]
        free = list(range(OPT["nslot"]))
        slot_of = {}
        nxt = 0
        issue_at = {}
        reserve_at = {6: 1, 7: 2} if A else {}
        release_at = OPT.get("xrel", 14)
        xslots = []
        for tstep in range(-1, len(steps)):
            if tstep >= 0:
                free += [slot_of[it] for it in steps[tstep]]
            for _ in range(reserve_at.get(tstep, 0)):
                xslots.append(free.pop())
            if A and tstep == release_at:
                free += xslots
            lst = []
            cap = OPT.get("pre", 4) if tstep < 0 else OPT.get("cap", 3) if tstep < 8 else 2
            while free and nxt < len(items) and len(lst) < cap:
                s = free.pop(0)
                slot_of[items[nxt]] = s
                lst.append(items[nxt])
                nxt += 1
            issue_at[tstep] = lst
        self.steps, self.slot_of, self.issue_at = steps, slot_of, issue_at

        pre = issue_at[-1]
        P += self.dma_item(pre[0], slot_of[pre[0]]) + self.dma_item(pre[1], slot_of[pre[1]])
        if A:
            P += gsetup
        if OPT.get("pbar", 1):
            P.append(BAR())
        P += self.srd(SW, sWS, None, WS_SIZE)
        self.vl16 = VReg("vl16", long=True)
        self.vzero = VReg("vzero", long=True)
        P += [V("v_lshlrev_b32", self.vl16, 4, lane), V("v_mov_b32", self.vzero, 0)]
        if not A:
            z4 = VReg("z4", 4)
            skip = self.label("nozero")
            P += [V("v_mov_b32", z4[k], 0) for k in range(4)]
            P += [S(f"s_mul_i32 {s_t0}, {s_j}, {ZBLK}"), S(f"s_add_u32 {s_t0}, {s_t0}, {WS_Z}"),
                  S(f"s_lshl_b32 {s_t1}, {s_w}, 10"), S(f"s_add_u32 {s_t1}, {s_t1}, {s_t0}"),
                  S(f"s_add_u32 {s_t0}, {s_t0}, 8192"),
                  S(f"s_cmp_lg_u32 {s_rb}, 0"), S(f"s_cbranch_scc1 {skip}"),
                  BSTORE("buffer_store_dwordx4", z4, self.vl16, SW, s_t1, 0, "sc1", counted=False),
                  BSTORE("buffer_store_dwordx4", z4, self.vl16, SW, s_t0, 0, "sc1", counted=False), LABEL(skip)]
        if OPT.get("touch", 0) & 2 and OPT.get("tb", 0) == 0:
            P += self.touch("b")
        for it in pre[2:4]:
            P += self.dma_item(it, slot_of[it])
        if OPT.get("touch", 0) & 2 and OPT.get("tb", 0) == 1:
            P += self.touch("b")
        gx, gw, ga = VReg("gx", 4), VReg("gw", 4), VReg("ga")
        P += [S(f"s_lshl_b32 {s_t0}, {s_rb}, 7"), S(f"s_lshl_b32 {s_t1}, {s_cg}, 3"), S(f"s_add_u32 {s_t0}, {s_t0}, {s_t1}"),
              S(f"s_add_u32 {s_t0}, {s_t0}, {s_w}"), S(f"s_lshl_b32 {s_t1}, {s_t0}, 10"),
              V("v_add_u32", ga, s_t1, self.vl16),
              GLOAD("global_load_dwordx4", gx, ga, sX), GLOAD("global_load_dwordx4", gw, self.vl16, sGW),
              S(f"s_lshl_b32 {s_ph}, {s_t0}, 2"), S(f"s_add_u32 {s_ph}, {s_ph}, {WS_G}")]
        if A:
            wr = [VReg("wr") for _ in range(8)]
            wa = VReg("wa")
            P += [S(f"s_lshl_b32 {s_t0}, {s_j}, 2"), S(f"s_lshl_b32 {s_t1}, {s_c}, 1"), S(f"s_add_u32 {s_t0}, {s_t0}, {s_t1}"),
                  S(f"s_lshl_b32 {s_t0}, {s_t0}, 9")]
            P += self.field(wa, [(2, 1, 9), (3, 2, 3), (0, 2, 1), (5, 1, 7)], init=s_t0)
            for k in range(8):
                P.append(GLOAD("global_load_ushort", wr[k], wa, sPHI, 256 * (k >> 2) + 32 * (k & 3)))
        for it in pre[4:]:
            P += self.dma_item(it, slot_of[it])
        P += [S(f"s_mov_b32 {s_L}, 0x3fb8aa3b"), S(f"s_mov_b32 {s_nL}, 0xbfb8aa3b")]
        P += [S(f"s_lshl_b32 {s_t0}, {s_cb}, 7")] + self.srd(SD, sWD, s_t0, 1835008) + self.srd(SO, sWO, s_t0, 524288)
        P += [S(f"s_lshl_b32 {s_t1}, {s_rb2}, 16"), S(f"s_add_u32 {s_t0}, {s_t0}, {s_t1}")] + self.srd(SOUT, sOUTP, s_t0, 2097152)
        P += [S(f"s_lshr_b32 {s_t0}, {s_w}, 1"), S(f"s_mul_i32 {s_t0}, {s_t0}, 320"), S(f"s_and_b32 {s_t1}, {s_w}, 1"),
              S(f"s_mul_i32 {s_R1}, {s_t1}, 192"), S(f"s_add_u32 {s_R1}, {s_R1}, {s_t0}"), S(f"s_add_u32 {s_R1}, {s_R1}, 512"),
              S(f"s_lshl_b32 {s_R1}, {s_R1}, 10"),
              S(f"s_lshl_b32 {s_R3h}, {s_t1}, 5"), S(f"s_add_u32 {s_R3h}, {s_R3h}, {s_t0}"), S(f"s_add_u32 {s_R3h}, {s_R3h}, 640"),
              S(f"s_lshl_b32 {s_R3h}, {s_R3h}, 10"), S(f"s_lshl_b32 {s_R3}, {s_w}, 16")]
        P += [S(f"s_lshl_b32 {s_t0}, {s_rb}, 2"), S(f"s_add_u32 {s_t0}, {s_t0}, {s_r}"), S(f"s_mul_i32 {s_t0}, {s_t0}, 144"),
              S(f"s_add_u32 {s_t0}, {s_t0}, {s_j}"), S(f"s_lshl_b32 {s_t0}, {s_t0}, 10"),
              S(f"s_lshl_b32 {s_t1}, {s_c}, 13"), S(f"s_add_u32 {s_hst1}, {s_t0}, {s_t1}"),
              S(f"s_add_u32 {s_hst2}, {s_hst1}, {s_t1}"),
              S(f"s_lshl_b32 {s_t0}, {s_rb2}, 1"), S(f"s_add_u32 {s_t0}, {s_t0}, {s_c}"), S(f"s_mul_i32 {s_t0}, {s_t0}, 144"),
              S(f"s_lshl_b32 {s_t1}, {s_r}, 1"), S(f"s_add_u32 {s_t0}, {s_t0}, {s_t1}"), S(f"s_lshl_b32 {s_hld}, {s_t0}, 10")]
        def f2off(dst, rbreg):
            return [S(f"s_lshr_b32 {s_t0}, {rbreg}, 1"), S(f"s_mul_i32 {s_t0}, {s_t0}, {ZBLK}"),
                    S(f"s_and_b32 {s_t1}, {rbreg}, 1"), S(f"s_lshl_b32 {s_t1}, {s_t1}, 7"),
                    S(f"s_add_u32 {s_t0}, {s_t0}, {s_t1}"), S(f"s_add_u32 {dst}, {s_t0}, {WS_Z + 8832}")]
        P += f2off(s_f2sig, s_rb) + [S(f"s_lshr_b32 {s_t2}, {s_rb2}, 1")] + f2off(s_f2wait, s_t2)
        if A:
            P += [S(f"s_mul_i32 {s_t0}, {s_j}, {ZBLK}"), S(f"s_add_u32 {s_t0}, {s_t0}, {WS_Z}"),
                  S(f"s_add_u32 {s_f1}, {s_t0}, 8704"),
                  S(f"s_mul_i32 {s_t1}, {s_r}, 2176"), S(f"s_add_u32 {s_tat}, {s_t0}, {s_t1}"),
                  S(f"s_lshl_b32 {s_t1}, {s_c}, 6"), S(f"s_add_u32 {s_tat}, {s_tat}, {s_t1}"),
                  S(f"s_mul_i32 {s_t1}, {s_c}, 4352"), S(f"s_add_u32 {s_tld}, {s_t0}, {s_t1}")]
        bx = [VReg(f"bx{i}") for i in range(4)]
        P += [S(f"s_lshl_b32 {s_t0}, {s_r}, 12")] + self.field(bx[0], [(0, 5, 7)], init=s_t0)
        P += [V("v_bfe_u32", t, lane, 1, 3), V("v_lshrrev_b32", t2, 5, lane), V("v_xor_b32", t, t, t2),
              V("v_lshl_add_u32", bx[0], t, 4, bx[0])]
        P += [V("v_xor_b32", bx[i], 32 * i, bx[0]) for i in range(1, 4)]
        bgu = [VReg("bgu0", long=True), VReg("bgu1", long=True)]
        gu_base = self.field(bgu[0], [(5, 1, 11), (4, 1, 10), (2, 2, 7), (0, 2, 3), (3, 2, 5)])
        gu_base += [S(f"s_lshl_b32 {s_t0}, {s_c}, 6"), V("v_xor_b32", bgu[0], s_t0, bgu[0]), V("v_xor_b32", bgu[1], 32, bgu[0])]
        if A:
            bkv = VReg("bkv")
            P += self.field(bkv, [(5, 1, 11), (2, 2, 7), (3, 1, 6), (4, 1, 5), (0, 2, 3)])
            P += [S(f"s_lshl_b32 {s_t0}, {s_c}, 6"), V("v_xor_b32", bkv, s_t0, bkv)]
        else:
            P += gu_base
        P += self.stamp()

        X = [VReg(f"X{k}", 4, long=True) for k in range(32)]
        M = self.main

        def add_slot(reads, mf):
            M.append((reads, mf))

        accs = {}
        bgh = VReg("bgh")
        bw2 = [VReg("bw20"), VReg("bw21")]
        Hf = {(ch, e): VReg(f"H{ch}_{e}", 4) for ch in range(18) for e in range(2)}
        accH = [VReg("accH0", 16), VReg("accH1", 16)]
        accO = [VReg("accO0", 16), VReg("accO1", 16)]
        for tstep, its in enumerate(steps):
            self.first[tstep] = len(M)
            kind, i = its[-1]
            sb = slot_of[its[-1]] * SLOT
            if kind in ("kv", "g0", "g1"):
                if i == 0:
                    accs[kind] = [VReg(kind + "a0", 16), VReg(kind + "a1", 16)]
                for ks in range(4):
                    xr = []
                    k = 4 * i + ks
                    if tstep < 8:
                        fix, imm = self.lds(bx[ks], slot_of[its[0]] * SLOT)
                        xr = fix + [DSR("ds_read_b128", X[k], bx[ks], imm)]
                    for tt in range(2):
                        if kind == "kv":
                            f, rd = self.trfrag(bkv, sb + ks * 4096 + tt * 1024, 512)
                        else:
                            f, rd = self.trfrag(bgu[tt], sb + ks * 4096, 512)
                        a = accs[kind][tt]
                        add_slot((xr if tt == 0 else []) + rd, MFMA(32, a, f, X[k], a if k else 0))
            elif kind == "q":
                if i == 0:
                    accs["q"] = VReg("qa", 16)
                for ks in range(8):
                    k = 8 * i + ks
                    f, rd = self.trfrag(bkv, sb + (ks & 3) * 4096 + (ks >> 2) * 1024, 512)
                    add_slot(rd, MFMA(32, accs["q"], f, X[k], accs["q"] if k else 0))
            elif kind == "gh":
                if i == 0:
                    accs["gh"] = VReg("gha", 16)
                for ks in range(8):
                    k = 8 * i + ks
                    f, rd = self.trfrag(bgh, sb + ks * 2048, 256)
                    add_slot(rd, MFMA(32, accs["gh"], f, X[k], accs["gh"] if k else 0))
            else:
                for e in range(2):
                    for nt in range(2):
                        f, rd = self.trfrag(bw2[nt], sb + e * 2048, 1024)
                        a = (accH if i < 14 else accO)[nt]
                        fresh = e == 0 and i in (0, 14)
                        add_slot(rd, MFMA(32, a, f, Hf[(i, e)], 0 if fresh else a))
        self.first[len(steps)] = len(M)
        F = self.first

        def bar(tstep):
            return F[tstep + 1] - D

        gs = VReg("gs")
        g = [V("v_mov_b32", gs, 0)]
        g += [V("v_dot2_f32_bf16", gs, gx[k], gw[k], gs) for k in range(4)]
        for sfx in ("row_shr:1", "row_shr:2", "row_shr:4", "row_shr:8"):
            g.append(V("v_add_f32", gs, gs, gs, suffix=sfx + " row_mask:0xf bank_mask:0xf bound_ctrl:0"))
        g.append(V("v_add_f32", gs, gs, gs, suffix="row_bcast:15 row_mask:0xa bank_mask:0xf", rmw=True))
        g.append(V("v_add_f32", gs, gs, gs, suffix="row_bcast:31 row_mask:0xc bank_mask:0xf", rmw=True))
        g.append([RL(s_side, gs, 63), V("v_mov_b32", gs, s_side)])
        g += [V("v_mul_f32", gs, s_nL, gs), V("v_exp_f32", gs, gs), V("v_add_f32", gs, 1.0, gs), V("v_rcp_f32", gs, gs),
              BSTORE("buffer_store_dword", gs, self.vzero, SW, s_ph, 0, "sc1", "gate")]
        self.place(g, F[2], F[3] - 1)

        def hload(ch):
            c0, mask = (ch & ~3, 3) if ch < 12 else (12, 1) if ch < 14 else (14, 3)
            return self.rot(s_side, s_rot2, ch - c0, mask, 8192, c0 * 8192, s_hld) + [
                    BLOAD("buffer_load_dwordx4", Hf[(ch, 0)], self.vl16, SW, s_side, 0, "sc1"),
                    BLOAD("buffer_load_dwordx4", Hf[(ch, 1)], self.vl16, SW, s_side, 1024, "sc1")]

        w2base = self.field(bw2[0], [(5, 1, 9), (2, 2, 7), (3, 1, 6), (4, 1, 5), (0, 2, 3)])
        w2base = [w2base + [S(f"s_lshl_b32 {s_side}, {s_r}, 12"), V("v_add_u32", bw2[0], s_side, bw2[0]),
                            V("v_xor_b32", bw2[1], 64, bw2[0])]]
        P2 = 20
        if A:
            self.A0, self.A1 = VReg("A0", 4, long=True), VReg("A1", 4, long=True)
            g = [V("v_lshl_or_b32", wr[2 * k], wr[2 * k + 1], 16, wr[2 * k]) for k in range(4)]
            tm = VReg("tm")
            g.append([V("v_and_b32", tm, 4, lane), VCMP("v_cmp_eq_u32", s_mask, 0, tm)])
            g += [V("v_cndmask_b32", self.A0[k], 0, wr[2 * k], s_mask) for k in range(4)]
            g += [V("v_cndmask_b32", self.A1[k], wr[2 * k], 0, s_mask) for k in range(4)]
            self.place(g, F[3], F[4] - 1)
            PH0, PH1, VB = xslots[0] * SLOT, xslots[1] * SLOT, xslots[2] * SLOT
            kacc, vacc = accs["kv"]
            pk, nh = self.phi_epi(kacc)
            va = VReg("va")
            vg_ = [[S(f"s_lshl_b32 {s_side}, {s_r}, 12"), S(f"s_add_u32 {s_side}, {s_side}, {VB}")]
                   + self.field(va, [(0, 5, 7), (3, 1, 6), (1, 1, 5), (2, 1, 4), (0, 1, 3)], init=s_side)]
            tv = VReg("tv")
            vg_.append([V("v_lshrrev_b32", tv, 5, lane), V("v_lshlrev_b32", tv, 3, tv), V("v_xor_b32", va, tv, va),
                        S(f"s_lshl_b32 {s_side}, {s_c}, 6"), V("v_xor_b32", va, s_side, va)])
            for qq in range(4):
                vg_ += [V("v_cvt_pk_bf16_f32", vacc[4 * qq], vacc[4 * qq], vacc[4 * qq + 1]),
                        V("v_cvt_pk_bf16_f32", vacc[4 * qq + 1], vacc[4 * qq + 2], vacc[4 * qq + 3]),
                        DSW("ds_write_b64", va, vacc[4 * qq:4 * qq + 2], 0)]
                if qq < 3:
                    vg_.append(V("v_xor_b32", va, 16 * (qq ^ (qq + 1)), va))
            pa = VReg("pa")
            pw = [[S(f"s_mov_b32 {s_side}, {(PH1 - 16384) & 0xffffffff}"), S(f"s_cmp_lt_u32 {s_r}, 2"), S(f"s_cselect_b32 {s_side}, {PH0}, {s_side}"),
                   S(f"s_lshl_b32 {s_t2}, {s_r}, 13"), S(f"s_add_u32 {s_side}, {s_side}, {s_t2}")]
                  + self.field(pa, [(0, 5, 8), (3, 1, 7), (1, 1, 6), (0, 1, 5), (2, 1, 4)], init=s_side)]
            tp = VReg("tp")
            pw.append([V("v_lshrrev_b32", tp, 5, lane), V("v_lshlrev_b32", tp, 6, tp), V("v_xor_b32", pa, tp, pa),
                       S(f"s_lshl_b32 {s_side}, {s_c}, 7"), V("v_xor_b32", pa, s_side, pa)])
            for qq in range(4):
                pw.append(DSW("ds_write_b128", pa, kacc[4 * qq:4 * qq + 4], 0))
                if qq < 3:
                    pw.append(V("v_xor_b32", pa, 16 * (qq ^ (qq + 1)), pa))
            e0, e1 = OPT.get("kve0", 8), OPT.get("kve1", 12)
            self.place(vg_ + pk + pw, F[e0], bar(e1) - 1)
            f0i, f0c = self.poll_f0()
            self.place([f0i], F[e1], F[e1])
            r1, r2, r3, r4 = VReg("rp1"), VReg("rp2"), VReg("rv1"), VReg("rv2")
            ta = VReg("ta")
            kv = [self.field(r1, [(2, 2, 8), (4, 2, 11), (4, 1, 7), (3, 1, 6), (2, 1, 5), (0, 1, 3)])
                  + [V("v_bfe_u32", ta, lane, 1, 1), V("v_lshlrev_b32", ta, 4, ta), V("v_xor_b32", r1, ta, r1),
                     S(f"s_lshl_b32 {s_side}, {s_r}, 6"), S(f"s_lshl_b32 {s_t2}, {s_c}, 5"),
                     S(f"s_add_u32 {s_side}, {s_side}, {s_t2}"), V("v_xor_b32", r1, s_side, r1), V("v_xor_b32", r2, 16, r1)]]
            kv.append(self.field(r3, [(2, 2, 7), (4, 2, 10), (4, 1, 6), (3, 1, 5), (2, 1, 3)])
                      + [V("v_and_b32", ta, 3, lane), V("v_lshlrev_b32", ta, 3, ta), V("v_xor_b32", r3, ta, r3),
                         S(f"s_lshl_b32 {s_side}, {s_r}, 5"), V("v_xor_b32", r3, s_side, r3), V("v_xor_b32", r4, 16, r3)])
            ones = VReg("ones", 4)
            kv += [V("v_mov_b32", ones[k], 0x3F803F80) for k in range(4)]
            D1, D2 = VReg("D1", 4), VReg("D2", 4)
            fr = []
            for m in range(4):
                fp, fv = VReg("fp", 4), VReg("fv", 4)
                pb = (PH0 if m < 2 else PH1) + (m & 1) * 8192
                for reg, dst, addr in ((r1, fp[0:2], pb), (r2, fp[2:4], pb + 1024), (r3, fv[0:2], VB + m * 4096),
                                       (r4, fv[2:4], VB + m * 4096 + 512)):
                    fix, imm = self.lds(reg, addr)
                    kv.append(fix + [DSR("ds_read_b64_tr_b16", dst, reg, imm)])
                fr.append((fp, fv))
                if m:
                    kv += [MFMA(16, D1, fr[m - 1][1], fr[m - 1][0], D1 if m > 1 else 0),
                           MFMA(16, D2, ones, fr[m - 1][0], D2 if m > 1 else 0)]
            kv += [MFMA(16, D1, fr[3][1], fr[3][0], D1), MFMA(16, D2, ones, fr[3][0], D2)]
            aa = VReg("aa")
            kv.append(self.field(aa, [(4, 2, 9), (0, 4, 2)]))
            kv.append(f0c)
            kv += [BSTORE("buffer_atomic_add_f32", D1[k], aa, SW, s_tat, 128 * k, "", "kvat") for k in range(4)]
            kv.append([S("s_mov_b64 exec, 0xffff"), BSTORE("buffer_atomic_add_f32", D2[0], aa, SW, s_tat, 2048, "", "kvat"),
                       S("s_mov_b64 exec, -1")])
            assert release_at >= e1 + 1
            self.place(kv, bar(e1), bar(release_at) - 1)
            self.place([gu_base], F[6], F[6])
            tf1 = OPT.get("f1sig", 16)
            self.prebar.setdefault(tf1, []).append("kvat")
            self.place([self.signal(s_f1, 1)], bar(tf1), bar(tf1))
            qacc = accs["q"]
            pq, nh = self.phi_epi(qacc)
            for e in range(2):
                for k in range(4):
                    pq.append(SWAP32(qacc[8 * e + k], qacc[8 * e + 4 + k]))
            qe = OPT.get("qe", 4)
            self.place(pq, F[P2], F[P2 + qe] - 1)
            gu = self.gu_epi(accs["g0"][0], s_hst2, 8, "S2") + self.gu_epi(accs["g0"][1], s_hst2, 9, "S2")
            self.place(gu, F[16], F[18] + OPT.get("gue", 3))
            f1i, f1c = self.poll_cnt(s_f1, 0, 16)
            self.place([f1i], F[P2], F[P2])
            tva = VReg("tva")
            og = [f1c, [V("v_and_b32", tva, 31, lane), V("v_min_u32", tva, 16, tva), V("v_lshlrev_b32", tva, 7, tva)]
                  + self.field(tva, [(5, 1, 5)], init=tva)]
            Traw = {}
            for hh in range(2):
                for e in range(2):
                    Traw[hh, e] = VReg("Traw", 8)
                    for half in range(2):
                        og.append(BLOAD("buffer_load_dwordx4", Traw[hh, e][4 * half:4 * half + 4], tva, SW, s_tld,
                                        hh * 2176 + 64 * e + 16 * half, "sc1"))
            self.place(og, F[P2 + 1], F[P2 + 2] - 1)
            og = []
            Os = []
            for hh in range(2):
                O = VReg("O", 16)
                Os.append(O)
                for e in range(2):
                    T = Traw[hh, e]
                    og += [V("v_cvt_pk_bf16_f32", T[k], T[2 * k], T[2 * k + 1]) for k in range(4)]
                for e in range(2):
                    og.append(MFMA(32, O, Traw[hh, e][0:4], qacc[8 * e + 4 * hh:8 * e + 4 * hh + 4], O if e else 0))
            for hh in range(2):
                O = Os[hh]
                og += [V("v_add_f32", O[8], 0x358637BD, O[8]), V("v_rcp_f32", O[8], O[8])]
                og += [V("v_mul_f32", O[k], O[8], O[k]) for k in range(8)]
                og += [V("v_cvt_pk_bf16_f32", O[k], O[2 * k], O[2 * k + 1]) for k in range(4)]
                og.append([S(f"s_add_u32 {s_side}, {s_hst2}, {(14 + hh) * 8192}"),
                           BSTORE("buffer_store_dwordx4", O[0:4], self.vl16, SW, s_side, 0, "sc1", "S4")])
            self.place(og, F[P2 + qe], F[P2 + qe + 2] - 2)
            ts2, ts4 = OPT.get("s2", 19), P2 + qe + OPT.get("s4", 3)
            self.prebar.setdefault(ts2, []).extend(["S2", "gate"])
            self.place([self.signal(s_f2sig, 1 << 8)], bar(ts2), bar(ts2))
            self.prebar.setdefault(ts4, []).append("S4")
            self.place([self.signal(s_f2sig, 1 << 24)], bar(ts4), bar(ts4))
        else:
            skip = self.label("nof0")
            tz, tz2 = VReg("tz"), VReg("tz2")
            self.place([[V("v_mov_b32", tz, 1), S(f"s_lshl_b32 {s_side}, {s_j}, 2"), V("v_mov_b32", tz2, s_side),
                         S(f"s_or_b32 {s_side}, {s_rb}, {s_w}"), S(f"s_cmp_lg_u32 {s_side}, 0"), S(f"s_cbranch_scc1 {skip}"),
                         GSTORE("global_store_dword", tz2, tz, sDBG, 0, "sc1", counted=False), LABEL(skip)]], bar(0), bar(0))
            self.vgh, self.vuh = VReg("vgh"), VReg("vuh")
            th = VReg("th")
            self.half_setup = [[V("v_lshrrev_b32", th, 2, lane), S(f"s_movk_i32 {s_side}, 3584"),
                                V("v_mul_u32_u24", self.vgh, s_side, th)] + self.field(self.vgh, [(0, 2, 4)], init=self.vgh)
                               + [V("v_xor_b32", self.vuh, 32, self.vgh)] + self.half_srd()]
            tg = min(t_ for t_, l_ in issue_at.items() if ("gh", 0) in l_)
            assert all(it[0] not in ("g0", "g1") for t_, l_ in issue_at.items() if t_ >= tg for it in l_)
            self.place(self.half_setup, bar(tg) - 1, bar(tg) - 1)
            g = self.field(bgh, [(4, 1, 10), (5, 1, 9), (2, 2, 6), (4, 1, 5), (0, 2, 3)])
            self.place([g + [S(f"s_lshl_b32 {s_side}, {s_c}, 5"), V("v_xor_b32", bgh, s_side, bgh)]], F[14], F[14])
            gu = self.gu_epi(accs["g0"][0], s_hst2, 0, "S1") + self.gu_epi(accs["g0"][1], s_hst2, 1, "S1")
            self.place(gu, F[8], F[11] - 1)
            f0i, f0c = self.poll_f0()
            self.place([f0i], F[10], F[10])
            self.place([f0c], F[12], F[12])
            self.prebar.setdefault(12, []).append("S1")
            self.place([self.signal(s_f2sig, 1)], bar(12), bar(12))
            gu = self.gu_epi(accs["g1"][0], s_hst2, 4, "S2") + self.gu_epi(accs["g1"][1], s_hst2, 5, "S2")
            self.place(gu, F[16], F[18] + OPT.get("gue", 3))
            ts2 = OPT.get("s2", 19)
            self.prebar.setdefault(ts2, []).extend(["S2", "gate"])
            self.place([self.signal(s_f2sig, 1 << 8)], bar(ts2), bar(ts2))
            gu = self.gu_epi(accs["gh"], s_hst1, 12, "S3")
            self.place(gu, F[P2], F[P2 + 1] - 1)
            ts3 = P2 + OPT.get("s3b", 2)
            self.prebar.setdefault(ts3, []).append("S3")
            self.place([self.signal(s_f2sig, 1 << 16)], bar(ts3), bar(ts3))
        if OPT.get("touch", 0) & 4:
            for key, tt in zip("cdefg", (OPT.get("tc", 1), OPT.get("td", 2), OPT.get("te", 4), OPT.get("tf", 5), OPT.get("tg", 6))):
                g = self.touch(key)
                if g:
                    self.place([g], F[tt], F[tt])
        self.place([[KEEP(self.vdummy)]], F[12], F[12])
        self.place(w2base, F[18], F[18])
        c2, c3, c4 = P2 + OPT.get("c2", 2), P2 + OPT.get("c3", 8), P2 + OPT.get("c4", 11)
        sets = [(0, 8, range(0, 4), 17, 18), (8, 16, range(4, 12), c2 - 1, c2), (16, 8, range(12, 14), c3 - 1, c3),
                (24, 8, range(14, 18), c4 - 1, c4)]
        for shift, want, chs, t_issue, t_chk in sets:
            pi, pc = self.poll_cnt(s_f2wait, shift, want)
            self.place([pi], F[t_issue], F[t_issue])
            self.place([pc], F[t_chk], F[t_chk])
            n = len(chs)
            self.place([hload(ch) for ch in chs], F[t_chk] + 1, F[t_chk] + 2 * n)
        gv, ga2 = VReg("gv"), VReg("ga2")
        self.place([[S(f"s_lshl_b32 {s_side}, {s_rb2}, 1"), S(f"s_add_u32 {s_side}, {s_side}, {s_c}"),
                     S(f"s_lshl_b32 {s_side}, {s_side}, 7"), S(f"s_add_u32 {s_side}, {s_side}, {WS_G}")]
                    + self.field(ga2, [(0, 5, 2)]) + [BLOAD("buffer_load_dword", gv, ga2, SW, s_side, 0, "sc1")]],
                   F[P2 + 10] + 1, F[P2 + 10] + 1)
        og_ = VReg("omg")
        g = [V("v_sub_f32", og_, 1.0, gv)]
        for nt in range(2):
            g += [V("v_mul_f32", accH[nt][k], og_, accH[nt][k]) for k in range(16)]
        self.place(g, F[P2 + 15], F[P2 + 17] - 1)

        last = slot_of[("w2", 17)]
        RB = 0 if last >= 5 else 163840 - 69632
        assert not (RB <= last * SLOT < RB + 69632) and not (RB < (last + 1) * SLOT <= RB + 69632)
        T = self.tail
        wa_, ra_, oa_ = VReg("redw"), VReg("redr"), VReg("outa")
        tr = VReg("tr")
        setup = [S(f"s_mul_i32 {s_side}, {s_w}, 8704"), S(f"s_add_u32 {s_side}, {s_side}, {RB}"),
                 V("v_and_b32", tr, 31, lane), S(f"s_movk_i32 {s_t2}, 272"), V("v_mul_u32_u24", wa_, s_t2, tr),
                 V("v_add_u32", wa_, s_side, wa_)] + self.field(wa_, [(5, 1, 4)], init=wa_)
        setup += [S(f"s_mul_i32 {s_side}, {s_c}, {4 * 8704}"), S(f"s_mul_i32 {s_t1}, {s_r}, {8 * 272}"),
                  S(f"s_add_u32 {s_side}, {s_side}, {s_t1}"), S(f"s_add_u32 {s_side}, {s_side}, {RB}"),
                  V("v_lshrrev_b32", tr, 4, lane), V("v_mul_u32_u24", ra_, s_t2, tr), V("v_add_u32", ra_, s_side, ra_)]
        setup += self.field(ra_, [(0, 4, 4)], init=ra_)
        setup += [S(f"s_lshl_b32 {s_side}, {s_w}, 13")] + self.field(oa_, [(4, 2, 10), (0, 4, 3)], init=s_side)
        self.place([setup], F[P2 + 16], F[P2 + 16])
        T.append("STAMP")
        for nt in range(2):
            for qq in range(4):
                T += [V("v_fmac_f32", accH[nt][4 * qq + k], gv, accO[nt][4 * qq + k]) for k in range(4)]
                T.append(DSW("ds_write_b128", wa_, accH[nt][4 * qq:4 * qq + 4], 128 * nt + 32 * qq))
        T += [WAITLGKM(), BAR()]
        parts = {}
        for i in range(2):
            for kq in range(4):
                parts[i, kq] = VReg("part", 4)
                T.append(DSR("ds_read_b128", parts[i, kq], ra_, kq * 8704 + i * 4 * 272))
        for i in range(2):
            for k in range(4):
                T.append(V("v_add_f32", parts[i, 0][k], parts[i, 0][k], parts[i, 1][k]))
                T.append(V("v_add_f32", parts[i, 2][k], parts[i, 2][k], parts[i, 3][k]))
            for k in range(4):
                T.append(V("v_add_f32", parts[i, 0][k], parts[i, 0][k], parts[i, 2][k]))
            T += [V("v_cvt_pk_bf16_f32", parts[i, 0][0], parts[i, 0][0], parts[i, 0][1]),
                  V("v_cvt_pk_bf16_f32", parts[i, 0][1], parts[i, 0][2], parts[i, 0][3])]
            if i:
                T.append(S(f"s_movk_i32 {s_side}, 4096"))
            T.append(BSTORE("buffer_store_dwordx2", parts[i, 0][0:2], oa_, SOUT, s_side if i else 0))
        if OPT["stamp"]:
            T += [WAITALL(), "STAMP"]
            sa = VReg("sa")
            T += [S(f"s_lshl_b32 {s_side}, s2, 3"), S(f"s_add_u32 {s_side}, {s_side}, {s_w}"), S(f"s_lshl_b32 {s_side}, {s_side}, 8"),
                  S(f"s_add_u32 {s_side}, {s_side}, {WS_STAMP}"), V("v_lshlrev_b32", sa, 2, lane),
                  BSTORE("buffer_store_dword", self.vst, sa, SW, s_side)]
            if OPT.get("dbgt", 0):
                d1, d2 = VReg("d1"), VReg("d2")
                for k, (idx, inv) in enumerate([(0, 1), (0, 0), (3, 0), (11, 0), (23, 0), (31, 0), (41, 0), (42, 0)]):
                    T += [RL(s_side, self.vst, idx)]
                    if inv:
                        T += [S(f"s_not_b32 {s_side}, {s_side}")]
                    T += [V("v_mov_b32", d1, s_side), V("v_mov_b32", d2, 32 + 4 * k), S("s_mov_b64 exec, 1"),
                          GSTORE("global_atomic_umax", d2, d1, sDBG), S("s_mov_b64 exec, -1")]

        out = list(P)
        out += [WAITVM(*steps[0]), BAR()] + self.stamp_issue()
        for m in range(D):
            out += M[m][0]
        step_at = {F[tt + 1] - D: tt for tt in range(len(steps) - 1)}
        pend = []
        for m in range(len(M)):
            if m in step_at:
                tt = step_at[m]
                out.append(COMMENT(f"---- end of step {tt}"))
                out += [WAITLGKM()] + self.stamp_collect()
                out += [WAITVM(*(steps[tt + 1] + self.prebar.get(tt, []))), BAR()] + self.stamp_issue()
                pend = [self.dma_item(it, slot_of[it]) for it in issue_at[tt]]
            if m + D < len(M):
                out += M[m + D][0]
            out.append(M[m][1])
            if pend:
                out += pend.pop(0)
            for g in self.side.get(m, []):
                out += g
        for x in T:
            if x == "STAMP":
                out += ([WAITLGKM()] + self.stamp_collect() if OPT["stamp"] else []) + self.stamp()
            else:
                out.append(x)
        out.append(S("s_endpgm"))
        return out

    def text(self):
        prog = self.build()
        prog, peak = finish(prog, 256)
        lines = [i.text() for i in prog]
        for slow, back, fn in self.slow:
            loop = slow + "_l"
            lines += [f"{slow}:", f"    s_mov_b32 {s_spin}, {OPT['spin']}", f"{loop}:"]
            lines += ["    " + x for x in fn()]
            lines += [f"    s_cbranch_scc1 {back}", "    s_sleep 1", f"    s_sub_u32 {s_spin}, {s_spin}, 1",
                      f"    s_cmp_lg_u32 {s_spin}, 0", f"    s_cbranch_scc1 {loop}", f"    s_branch {back}"]
        n = {}
        for i in prog:
            n[i.kind] = n.get(i.kind, 0) + 1
        print(self.typ, "peak vgpr", peak, n, file=sys.stderr)
        print(self.typ, "issue_at", {k: [f"{a}{b}@{self.slot_of[(a, b)]}" for a, b in v] for k, v in self.issue_at.items() if v},
              file=sys.stderr)
        return "\n".join(lines)


def main():
    ref = open(f"cdna_kernels/{NAME}.s.ref").read().splitlines()
    head = [l for l in ref if l.startswith(";") and "@launch" not in l]
    o = head + ["; @launch grid=(256,1,1) block=(512,1,1) lds=163840",
                '.amdgcn_target "amdgcn-amd-amdhsa--gfx950"', ".text", f".globl {NAME}_kernel", ".p2align 8",
                f".type {NAME}_kernel,@function", f"{NAME}_kernel:"]
    if OPT["stamp"]:
        o.append("    " + ("s_memrealtime" if OPT["stamp"] == 1 else "s_memtime") + " s[96:97]")
    o += ["    " + x for x in f"""s_cmp_ge_u32 s2, 256
s_cbranch_scc1 L_exit
s_load_dwordx16 s[4:19], s[0:1], 0
s_load_dwordx8 s[20:27], s[0:1], 64
s_and_b32 {s_t0}, s2, 7
s_lshr_b32 {s_t1}, s2, 3
s_and_b32 {s_rb}, {s_t0}, 1
s_lshl_b32 {s_rb}, {s_rb}, 3
s_and_b32 {s_t2}, {s_t1}, 7
s_add_u32 {s_rb}, {s_rb}, {s_t2}
s_lshr_b32 {s_cg}, {s_t0}, 1
s_lshl_b32 {s_cg}, {s_cg}, 2
s_lshr_b32 {s_t2}, {s_t1}, 3
s_add_u32 {s_cg}, {s_cg}, {s_t2}
s_lshr_b32 {s_j}, {s_cg}, 1
s_lshl_b32 {s_rb2}, {s_t0}, 2
s_and_b32 {s_t2}, {s_t1}, 3
s_add_u32 {s_rb2}, {s_rb2}, {s_t2}
s_lshr_b32 {s_cb}, {s_t1}, 2
s_bitcmp1_b32 {s_cg}, 0
s_cbranch_scc1 L_typeB""".splitlines()]
    o.append(Prog("A").text())
    o.append("L_exit:\n    s_endpgm")
    o.append(".p2align 6\nL_typeB:")
    o.append(Prog("B").text())
    o.append(f""".section .rodata,"a"
.p2align 6
.amdhsa_kernel {NAME}_kernel
  .amdhsa_next_free_vgpr 256
  .amdhsa_next_free_sgpr 102
  .amdhsa_accum_offset 256
  .amdhsa_group_segment_fixed_size 0
  .amdhsa_kernarg_size 96
  .amdhsa_user_sgpr_count 2
  .amdhsa_user_sgpr_kernarg_segment_ptr 1
  .amdhsa_system_sgpr_workgroup_id_x 1
.end_amdhsa_kernel""")
    open(sys.argv[1], "w").write("\n".join(o) + "\n")


main()
```

```python
import os, sys
sys.path.insert(0, os.path.dirname(os.path.abspath(__file__)))
from asmfw import *

NAME = "gated_mix__linear_kernel_hedgehog__glu_gated_glu__prompt"
OPT = dict(stamp=0, D=2, nslot=10, spin=1 << 22)
for a in sys.argv[2:]:
    k, v = a.split("=")
    OPT[k] = int(v)
D = OPT["D"]
SLOT = 16384

WS_H = 0
WS_Z = 0x900000
ZBLK = 9216
WS_G = 0x920000
WS_STAMP = 0x930000
WS_SIZE = 0xA00000

sX, sQKV, sPHI, sWO, sWG, sWU, sWD = "s[4:5]", "s[6:7]", "s[8:9]", "s[10:11]", "s[14:15]", "s[16:17]", "s[18:19]"
sGW, sOUTP, sDBG, sWS = "s[20:21]", "s[22:23]", "s[24:25]", "s[26:27]"
SX, SQ, SG, SU, SD, SO, SW, SOUT = ("s[28:31]", "s[32:35]", "s[36:39]", "s[40:43]", "s[44:47]", "s[48:51]",
                                    "s[52:55]", "s[56:59]")
s_w, s_r, s_c, s_j, s_rb, s_rb2, s_cb, s_cg = "s60", "s61", "s62", "s63", "s64", "s65", "s66", "s67"
s_w2048, s_u, s_h, s_R1, s_R3, s_R3h, s_L, s_nL = "s68", "s69", "s70", "s71", "s72", "s73", "s74", "s75"
s_so0, s_so1, s_side = "s76", "s77", "s78"
s_hst2, s_hst1, s_hld, s_tat, s_tld, s_f2sig, s_f2wait, s_f1 = "s79", "s80", "s81", "s82", "s83", "s84", "s85", "s86"
s_t0, s_t1, s_t2 = "s87", "s88", "s89"
s_mask = "s[90:91]"
s_spin, s_ph = "s92", "s93"
s_ts = "s[94:95]"
s_rot, s_roth, s_rot2 = "s100", "s101", "s3"


def srd_lo(s):
    return int(s[2:s.index(":")])


class Prog:
    def __init__(self, typ):
        self.typ = typ
        self.pro = []
        self.main = []
        self.first = {}
        self.side = {}
        self.prebar = {}
        self.tail = []
        self.slow = []
        self.v0 = VReg("v0", fixed=0)
        self.nstamp = 0
        self.vst = VReg("stamps", long=True) if OPT["stamp"] else None
        self.nlab = 0

    def label(self, n):
        self.nlab += 1
        return f"L{self.typ}_{n}_{self.nlab}"

    def stamp(self):
        if not OPT["stamp"]:
            return []
        return [WAITLGKM()] + self.stamp_issue() + self.stamp_collect()

    def stamp_issue(self):
        if not OPT["stamp"]:
            return []
        self.stamp_pending = True
        return [S(("s_memrealtime " if OPT["stamp"] == 1 else "s_memtime ") + s_ts)]

    def stamp_collect(self):
        if not OPT["stamp"] or not getattr(self, "stamp_pending", False):
            return []
        self.stamp_pending = False
        k = self.nstamp
        self.nstamp += 1
        i = Inst("v_writelane_b32", [self.vst.ref(), "s94", k], [self.vst], [self.vst], "valu")
        return [S("s_waitcnt lgkmcnt(0)"), i]

    def place(self, groups, m0, m1):
        groups = [g if isinstance(g, list) else [g] for g in groups]
        tot = sum(sum(i.cost for i in g) for g in groups) or 1.0
        n = m1 - m0 + 1
        acc = 0.0
        for g in groups:
            m = m0 + min(n - 1, int(acc / tot * n))
            self.side.setdefault(m, []).append(g)
            acc += sum(i.cost for i in g)

    def lds(self, base, addr):
        fix = []
        if not (0 <= addr - base.bias < 65536):
            nb = addr & ~0xFFFF
            fix.append(V("v_add_u32", base, nb - base.bias, base))
            base.bias = nb
        return fix, addr - base.bias

    def trfrag(self, base, addr, step2):
        f = VReg("frag", 4)
        fix, imm = self.lds(base, addr)
        assert imm + step2 < 65536
        return f, fix + [DSR("ds_read_b64_tr_b16", f[0:2], base, imm), DSR("ds_read_b64_tr_b16", f[2:4], base, imm + step2)]

    def field(self, dst, fields, init=None):
        out = []
        t = VReg("ft")
        cur = init
        for lo, width, pos in fields:
            out.append(V("v_bfe_u32", t, self.lane, lo, width))
            if cur is None:
                out.append(V("v_lshlrev_b32", dst, pos, t))
            else:
                out.append(V("v_lshl_add_u32", dst, t, pos, cur))
            cur = dst
        return out

    def srd(self, s, ptr, shift, total, minus=0):
        a, p = srd_lo(s), srd_lo(ptr)
        o = []
        if shift is None:
            o += [S(f"s_mov_b32 s{a}, s{p}"), S(f"s_mov_b32 s{a+1}, s{p+1}"), S(f"s_mov_b32 s{a+2}, {total}")]
        else:
            o += [S(f"s_add_u32 s{a}, s{p}, {shift}"), S(f"s_addc_u32 s{a+1}, s{p+1}, 0"),
                  S(f"s_sub_u32 s{a+2}, {total + minus}, {shift}")]
            if minus:
                o += [S(f"s_sub_u32 s{a}, s{a}, {minus}"), S(f"s_subb_u32 s{a+1}, s{a+1}, 0")]
        o.append(S(f"s_mov_b32 s{a+3}, 0x20000"))
        return o

    def poll_cnt(self, soff, shift, want):
        vp = VReg("poll")
        issue = [BLOAD("buffer_load_dword", vp, self.vzero, SW, soff, 0, "sc1")]
        slow, back = self.label("slow"), self.label("back")
        chk = [RFL(s_t0, vp), S(f"s_bfe_u32 {s_t0}, {s_t0}, {hex((8 << 16) | shift)}"),
               S(f"s_cmp_eq_u32 {s_t0}, {want}"), S(f"s_cbranch_scc0 {slow}"), LABEL(back), KEEP(vp, self.vzero)]
        self.slow.append((slow, back, lambda: [
            f"buffer_load_dword {vp.ref().text()}, {self.vzero.ref().text()}, {SW}, {soff} offen sc1",
            "s_waitcnt vmcnt(0)", f"v_readfirstlane_b32 {s_t0}, {vp.ref().text()}", "s_nop 1",
            f"s_bfe_u32 {s_t0}, {s_t0}, {hex((8 << 16) | shift)}", f"s_cmp_eq_u32 {s_t0}, {want}"]))
        return issue, chk

    def poll_f0(self):
        vp, va = VReg("poll"), VReg("polla")
        issue = self.field(va, [(0, 3, 2)]) + [GLOAD("global_load_dword", vp, va, sDBG, 0, "sc1")]
        slow, back = self.label("slow"), self.label("back")
        chk = [VCMP("v_cmp_ne_u32", "vcc", 0, vp), S("s_cmp_eq_u64 vcc, -1"), S(f"s_cbranch_scc0 {slow}"),
               LABEL(back), KEEP(vp, va)]
        self.slow.append((slow, back, lambda: [
            f"global_load_dword {vp.ref().text()}, {va.ref().text()}, {sDBG} sc1", "s_waitcnt vmcnt(0)",
            f"v_cmp_ne_u32 vcc, 0, {vp.ref().text()}", "s_nop 1", "s_cmp_eq_u64 vcc, -1"]))
        return issue, chk

    def signal(self, soff, val):
        skip = self.label("nosig")
        t = VReg("sigv")
        a = BSTORE("buffer_atomic_add", t, self.vzero, SW, soff, counted=False)
        return [V("v_mov_b32", t, val), S(f"s_cmp_lg_u32 {s_w}, 0"), S(f"s_cbranch_scc1 {skip}"),
                S("s_mov_b64 exec, 1"), a, S("s_mov_b64 exec, -1"), LABEL(skip)]

    def rot(self, dst, reg, i, mask, mul, add=0, base=None):
        if not OPT.get("rot", 1):
            v = (i & mask) * mul + add
            return [S(f"s_add_u32 {dst}, {base}, {v}") if base else S(f"s_mov_b32 {dst}, {v}")]
        o = [S(f"s_add_u32 {dst}, {reg}, {i}"), S(f"s_and_b32 {dst}, {dst}, {mask}"), S(f"s_mul_i32 {dst}, {dst}, {mul}")]
        if add:
            o.append(S(f"s_add_u32 {dst}, {dst}, {add & 0xFFFFFFFF}"))
        if base:
            o.append(S(f"s_add_u32 {dst}, {dst}, {base}"))
        return o

    def dma_item(self, it, slot):
        kind, i = it
        tag = it
        o = [S(f"s_add_u32 m0, {s_w2048}, {slot * SLOT}")]
        if kind == "x":
            o += self.rot(s_so0, s_rot, i, 7, 128) + [DMA(self.vx0, SX, s_so0, 0, tag), DMA(self.vx1, SX, s_so0, 1024, tag)]
        elif kind == "kv":
            o += self.rot(s_so0, s_rot, i, 7, 64 * 3072, 1024) + [DMA(self.vkv, SQ, s_so0, 0, tag),
                                                                  DMA(self.vkv, SQ, s_so0, 1024, tag)]
        elif kind == "q":
            o += self.rot(s_so0, s_rot, 2 * i, 7, 64 * 3072) + [DMA(self.vkv, SQ, s_so0, 0, tag)]
            o += [S(f"s_add_u32 m0, {s_w2048}, {slot * SLOT + 1024}")]
            o += self.rot(s_so1, s_rot, 2 * i + 1, 7, 64 * 3072) + [DMA(self.vkv, SQ, s_so1, 0, tag)]
        elif kind in ("g0", "g1"):
            u = int(kind[1])
            o += self.rot(s_so0, s_rot, i, 7, 64 * 3584, 128 * u, s_u if self.typ == "B" else None)
            o += [DMA(self.vg, SG, s_so0, 0, tag), DMA(self.vu, SU, s_so0, 1024, tag)]
        elif kind == "gh":
            assert OPT.get("rot", 1)
            o += self.rot(s_so0, s_roth, 2 * i, 7, 64 * 3584, 0, s_h)
            o += [DMA(self.vgh, SG, s_so0, 0, tag), DMA(self.vuh, SU, s_so0, 1024, tag)]
        elif kind == "w2":
            if i < 8:
                base, srd, rows, k, mask = s_R1, SD, 64 * (i >> 2), i & 3, 3
            elif i < 12:
                base, srd, rows, k, mask = s_R3, SD, 0, i - 8, 3
            elif i < 14:
                base, srd, rows, k, mask = s_R3h, SD, 0, i - 12, 1
            else:
                base, srd, rows, k, mask = s_R3, SO, 0, i - 14, 3
            o += self.rot(s_so0, s_rot2, k, mask, 16384, rows * 1024, base)
            o += [DMA(self.vw2a, srd, s_so0, 0, tag), DMA(self.vw2b, srd, s_so0, 1024, tag)]
        return o

    def half_srd(self):
        d = s_side
        o = [S(f"s_lshl_b32 {d}, {s_r}, 4"), S(f"s_lshl_b32 {s_t2}, {s_w}, 3"), S(f"s_sub_i32 {d}, {d}, {s_t2}"),
             S(f"s_mul_i32 {d}, {d}, 3584"), S(f"s_ashr_i32 {s_t2}, {d}, 31")]
        for srd in (SG, SU):
            a = srd_lo(srd)
            o += [S(f"s_add_u32 s{a}, s{a}, {d}"), S(f"s_addc_u32 s{a+1}, s{a+1}, {s_t2}"), S(f"s_sub_u32 s{a+2}, s{a+2}, {d}")]
        return o

    def touch(self, which):
        A = self.typ == "A"
        a, col, off, pit, sh, lst = s_side, s_t2, s_t0, s_t1, "s96", "s97"
        ptr = "s[98:99]"

        def unit(p, pitch, extra):
            return [f"s_mov_b64 {ptr}, {p}", f"s_movk_i32 {pit}, {pitch}", f"s_mul_i32 {off}, {a}, {64 * pitch}",
                    f"s_add_u32 {off}, {off}, {extra}", f"s_add_u32 {off}, {off}, {col}", f"s_mov_b32 {sh}, 0",
                    f"s_mov_b32 {lst}, 0"]

        def wch(p, pitch, extra, c0):
            return [f"s_mov_b64 {ptr}, {p}", f"s_mov_b32 {pit}, {64 * pitch}", f"s_mul_i32 {off}, {a}, {8 * pitch}",
                    f"s_add_u32 {off}, {off}, {extra + c0 * 64 * pitch}", f"s_add_u32 {off}, {off}, {col}",
                    f"s_mov_b32 {sh}, 3", f"s_movk_i32 {lst}, {pitch}", "s_mov_b32 exec_hi, 0"]

        def xt(c0):
            return [f"s_mov_b64 {ptr}, {sX}", f"s_movk_i32 {pit}, 1024", f"s_and_b32 {off}, {s_cg}, 3",
                    f"s_lshl_b32 {off}, {off}, 15", f"s_lshl_b32 {sh}, {s_rb}, 17", f"s_add_u32 {off}, {off}, {sh}",
                    f"s_add_u32 {off}, {off}, {c0 * 128}", f"s_mov_b32 {sh}, 1", f"s_movk_i32 {lst}, 128"]
        wd = [f"s_mov_b64 {ptr}, {sWD}", f"s_movk_i32 {pit}, 1024", f"s_mul_i32 {off}, s2, 7168",
              f"s_mov_b32 {sh}, 3", f"s_movk_i32 {lst}, 128", "s_mov_b32 exec_hi, 0xffffff"]
        wo = [f"s_mov_b64 {ptr}, {sWO}", f"s_movk_i32 {pit}, 1024", f"s_lshl_b32 {off}, s2, 11",
              f"s_mov_b32 {sh}, 3", f"s_movk_i32 {lst}, 128", "s_mov_b64 exec, 0xffff"]
        if A:
            colA = [f"s_lshl_b32 {col}, {s_j}, 7"]
            tab = {"a": [xt(0), xt(2), colA + wch(sQKV, 3072, 1024, 0), colA + wch(sQKV, 3072, 2048, 0)],
                   "b": [xt(4), xt(6), colA + wch(sQKV, 3072, 1024, 4), colA + wch(sQKV, 3072, 2048, 4)],
                   "c": [colA + unit(sWG, 3584, 0)], "d": [colA + unit(sWU, 3584, 0)],
                   "e": [colA + unit(sQKV, 3072, 0)], "f": [], "g": [wd, wo]}
        else:
            col0 = [f"s_lshr_b32 {col}, {s_j}, 1", f"s_mul_i32 {col}, {col}, 640", f"s_add_u32 {col}, {col}, 1024"]
            colB = col0 + [f"s_and_b32 {off}, {s_j}, 1", f"s_mul_i32 {off}, {off}, 384", f"s_add_u32 {col}, {col}, {off}"]
            tab = {"a": [xt(0), xt(2), colB + wch(sWG, 3584, 0, 0), colB + wch(sWU, 3584, 0, 0)],
                   "b": [xt(4), xt(6), colB + wch(sWG, 3584, 0, 4), colB + wch(sWU, 3584, 0, 4)],
                   "c": [colB + unit(sWG, 3584, 128)], "d": [colB + unit(sWU, 3584, 128)],
                   "e": [col0 + unit(sWG, 3584, 256)], "f": [col0 + unit(sWU, 3584, 256)], "g": [wd, wo]}
        blocks = tab[which]
        if not blocks:
            return []
        join, done = self.label("tj"), self.label("td")
        txt = [f"s_bfe_u32 {a}, s2, 0x30003"]
        labs = [self.label("tb") for _ in blocks]
        for k in range(len(blocks)):
            txt += [f"s_cmp_eq_u32 {s_w}, {k}", f"s_cbranch_scc1 {labs[k]}"]
        txt.append(f"s_branch {done}")
        out = [S(x, cost=0.1) for x in txt]
        for k in range(len(blocks)):
            out.append(LABEL(labs[k]))
            out += [S(x, cost=0.1) for x in blocks[k]]
            if k != len(blocks) - 1:
                out.append(S(f"s_branch {join}"))
        out.append(LABEL(join))
        vt, vr = VReg("vt"), VReg("vr")
        ld = GLOAD("global_load_dword", self.vdummy, vt, ptr, 0, "nt" if OPT.get("tnt", 0) and which != "g" else "", counted=False)
        ld.defs = []
        out += [V("v_lshrrev_b32", vr, sh, self.lane), V("v_lshlrev_b32", vt, sh, vr), V("v_sub_u32", vt, self.lane, vt),
                V("v_mul_u32_u24", vt, lst, vt), V("v_mad_u32_u24", vt, vr, pit, vt), V("v_add_u32", vt, off, vt),
                ld, S("s_mov_b64 exec, -1"), LABEL(done)]
        return out

    def gu_epi(self, acc, sbase, ch, tag):
        g = []
        for k in range(8):
            g.append(V("v_mul_f32", acc[k], s_nL, acc[k]))
        for k in range(8):
            g.append(V("v_exp_f32", acc[k], acc[k]))
        for k in range(8):
            g.append(V("v_add_f32", acc[k], 1.0, acc[k]))
        for k in range(8):
            g.append(V("v_rcp_f32", acc[k], acc[k]))
        for k in range(8):
            g.append(V("v_mul_f32", acc[8 + k], acc[k], acc[8 + k]))
        for k in range(4):
            g.append(V("v_cvt_pk_bf16_f32", acc[k], acc[8 + 2 * k], acc[9 + 2 * k]))
        g.append([S(f"s_add_u32 {s_side}, {sbase}, {ch * 8192}"),
                  BSTORE("buffer_store_dwordx4", acc[0:4], self.vl16, SW, s_side, 0, "sc1", tag)])
        return g

    def phi_epi(self, acc):
        g = []
        kb, P = VReg("kb", 8), VReg("P", 16)
        for k in range(8):
            g.append(V("v_cvt_pk_bf16_f32", kb[k], acc[2 * k], acc[2 * k + 1]))
        g.append(MFMA(32, P, self.A0, kb[0:4], 0))
        g.append(MFMA(32, P, self.A1, kb[4:8], P))
        n_head = len(g)
        mx, mn = VReg("mx"), VReg("mn")
        g.append(V("v_max3_f32", mx, P[0], P[1], P[2]))
        g.append(V("v_min3_f32", mn, P[0], P[1], P[2]))
        for k in range(3, 15, 2):
            g.append(V("v_max3_f32", mx, mx, P[k], P[k + 1]))
            g.append(V("v_min3_f32", mn, mn, P[k], P[k + 1]))
        g.append(V("v_max_f32", mx, mx, P[15]))
        g.append(V("v_min_f32", mn, mn, P[15]))
        g.append(V("v_mul_f32", mx, s_nL, mx))
        g.append(V("v_mul_f32", mn, s_L, mn))
        for k in range(16):
            g.append(V("v_fma_f32", acc[k], P[k], s_L, mx))
            g.append(V("v_fma_f32", P[k], P[k], s_nL, mn))
            if k:
                g.append(V("v_exp_f32", acc[k - 1], acc[k - 1]))
                g.append(V("v_exp_f32", P[k - 1], P[k - 1]))
        g.append(V("v_exp_f32", acc[15], acc[15]))
        g.append(V("v_exp_f32", P[15], P[15]))
        sp, sn = VReg("sp"), VReg("sn")
        g.append(V("v_add_f32", sp, acc[0], acc[1]))
        g.append(V("v_add_f32", sn, P[0], P[1]))
        for k in range(2, 16):
            g.append(V("v_add_f32", sp, sp, acc[k]))
            g.append(V("v_add_f32", sn, sn, P[k]))
        g.append(V("v_rcp_f32", sp, sp))
        g.append(V("v_rcp_f32", sn, sn))
        for k in range(8):
            g.append(V("v_mul_f32", acc[2 * k], sp, acc[2 * k]))
            g.append(V("v_mul_f32", acc[2 * k + 1], sp, acc[2 * k + 1]))
            g.append(V("v_cvt_pk_bf16_f32", acc[k], acc[2 * k], acc[2 * k + 1]))
        for k in range(8):
            g.append(V("v_mul_f32", P[2 * k], sn, P[2 * k]))
            g.append(V("v_mul_f32", P[2 * k + 1], sn, P[2 * k + 1]))
            g.append(V("v_cvt_pk_bf16_f32", acc[8 + k], P[2 * k], P[2 * k + 1]))
        return g, n_head

    def build(self):
        A = self.typ == "A"
        P = self.pro
        self.lane = lane = VReg("lane", long=True)
        t = VReg("t")
        P += [V("v_lshrrev_b32", t, 6, self.v0), V("v_and_b32", lane, 63, self.v0), RFL(s_w, t)]
        if OPT["stamp"]:
            P += [V("v_mov_b32", self.vst, 0)]
        self.vx0, self.vx1 = VReg("vx0"), VReg("vx1")
        q, p, q1 = VReg("q"), VReg("p"), VReg("q1")
        P += [V("v_lshrrev_b32", q, 3, lane), V("v_and_b32", p, 7, lane), V("v_lshrrev_b32", q1, 4, lane),
              V("v_xor_b32", t, p, q1), V("v_lshlrev_b32", t, 4, t), V("v_lshl_add_u32", self.vx0, q, 10, t),
              V("v_xor_b32", self.vx1, 64, self.vx0), V("v_add_u32", self.vx1, 7168, self.vx1),
              V("v_and_b32", q1, 1, q1)]
        self.vg, self.vu = VReg("vg", long=True), VReg("vu", long=True)
        t2 = VReg("t2")
        P += [S(f"s_movk_i32 {s_t0}, 3584"), V("v_lshlrev_b32", t, 1, q1), V("v_xor_b32", t, p, t),
              V("v_lshlrev_b32", t, 4, t), V("v_mad_u32_u24", self.vg, q, s_t0, t), V("v_xor_b32", self.vu, 64, self.vg)]
        self.vw2a, self.vw2b = VReg("vw2a", long=True), VReg("vw2b", long=True)
        P += [V("v_lshlrev_b32", t2, 2, q1), V("v_xor_b32", t2, p, t2), V("v_lshlrev_b32", t2, 4, t2),
              V("v_lshl_add_u32", self.vw2a, q, 10, t2), V("v_add_u32", self.vw2b, 7168, self.vw2a)]
        if A:
            self.vkv = VReg("vkv", long=True)
            P += [S(f"s_movk_i32 {s_t1}, 3072"), V("v_mad_u32_u24", self.vkv, q, s_t1, t2)]
        P += [S(f"s_and_b32 {s_r}, {s_w}, 3"), S(f"s_lshr_b32 {s_c}, {s_w}, 2"), S(f"s_lshl_b32 {s_w2048}, {s_w}, 11"),
              S(f"s_mul_i32 {s_t2}, {s_w}, {8 * 3584}")]
        P += [S(f"s_bfe_u32 {s_rot}, s2, 0x30003"), S(f"s_lshr_b32 {s_t0}, s2, 6"), S(f"s_lshl_b32 {s_t0}, {s_t0}, 1"),
              S(f"s_add_u32 {s_rot}, {s_rot}, {s_t0}"), S(f"s_add_u32 {s_roth}, {s_rot}, {s_c}"),
              S(f"s_add_u32 {s_rot2}, {s_cb}, {s_rb2}")]
        if not OPT.get("rot1", 1):
            P += [S(f"s_mov_b32 {s_rot}, 0"), S(f"s_mov_b32 {s_roth}, {s_c}")]
        if not OPT.get("rot2", 1):
            P += [S(f"s_mov_b32 {s_rot2}, 0")]
        P += [S("s_waitcnt lgkmcnt(0)")]
        if OPT["stamp"]:
            P.append(Inst("v_writelane_b32", [self.vst.ref(), "s96", 0], [self.vst], [self.vst], "valu"))
            self.nstamp = 1
            P += self.stamp()
        self.vdummy = VReg("dummy", long=True)
        P.append(V("v_mov_b32", self.vdummy, 0))
        if OPT.get("touch", 0) & 1:
            P += self.touch("a")
        P += [S(f"s_mul_i32 {s_t2}, {s_w}, {8 * 3584}")]
        P += [S(f"s_lshl_b32 {s_t0}, {s_rb}, 17"), S(f"s_lshl_b32 {s_t1}, {s_w}, 14"), S(f"s_add_u32 {s_t0}, {s_t0}, {s_t1}")]
        P += self.srd(SX, sX, s_t0, 2097152)
        if A:
            P += [S(f"s_mul_i32 {s_t0}, {s_w}, {8 * 3072}"), S(f"s_lshl_b32 {s_t1}, {s_j}, 7"),
                  S(f"s_add_u32 {s_t0}, {s_t0}, {s_t1}")]
            P += self.srd(SQ, sQKV, s_t0, 1572864)
            gsetup = [S(f"s_lshl_b32 {s_t1}, {s_j}, 7"), S(f"s_add_u32 {s_t0}, {s_t2}, {s_t1}"), S(f"s_mov_b32 {s_u}, 0")]
        else:
            gsetup = [S(f"s_lshr_b32 {s_t1}, {s_j}, 1"), S(f"s_mul_i32 {s_t1}, {s_t1}, 640"),
                      S(f"s_add_u32 {s_t0}, {s_t2}, {s_t1}"), S(f"s_add_u32 {s_t0}, {s_t0}, 1024"),
                      S(f"s_and_b32 {s_t1}, {s_j}, 1"), S(f"s_mul_i32 {s_u}, {s_t1}, 384"),
                      S(f"s_lshl_b32 {s_h}, {s_t1}, 6"), S(f"s_add_u32 {s_h}, {s_h}, 256")]
        gsetup += self.srd(SG, sWG, s_t0, 1835008) + self.srd(SU, sWU, s_t0, 1835008, minus=1024)
        if not A:
            P += gsetup

        steps = []
        for i in range(8):
            steps.append([("x", i), ("kv" if A else "g0", i)])
        if A:
            steps += [[("g0", i)] for i in range(8)] + [[("q", i)] for i in range(4)]
        else:
            steps += [[("g1", i)] for i in range(8)] + [[("gh", i)] for i in range(4)]
        steps += [[("w2", i)] for i in range(18)]
        items = [it for s in steps for it in s]
        free = list(range(OPT["nslot"]))
        slot_of = {}
        nxt = 0
        issue_at = {}
        reserve_at = {6: 1, 7: 2} if A else {}
        release_at = OPT.get("xrel", 14)
        xslots = []
        for tstep in range(-1, len(steps)):
            if tstep >= 0:
                free += [slot_of[it] for it in steps[tstep]]
            for _ in range(reserve_at.get(tstep, 0)):
                xslots.append(free.pop())
            if A and tstep == release_at:
                free += xslots
            lst = []
            cap = OPT.get("pre", 4) if tstep < 0 else OPT.get("cap", 3) if tstep < 8 else 2
            while free and nxt < len(items) and len(lst) < cap:
                s = free.pop(0)
                slot_of[items[nxt]] = s
                lst.append(items[nxt])
                nxt += 1
            issue_at[tstep] = lst
        self.steps, self.slot_of, self.issue_at = steps, slot_of, issue_at

        pre = issue_at[-1]
        P += self.dma_item(pre[0], slot_of[pre[0]]) + self.dma_item(pre[1], slot_of[pre[1]])
        if A:
            P += gsetup
        if OPT.get("pbar", 1):
            P.append(BAR())
        P += self.srd(SW, sWS, None, WS_SIZE)
        self.vl16 = VReg("vl16", long=True)
        self.vzero = VReg("vzero", long=True)
        P += [V("v_lshlrev_b32", self.vl16, 4, lane), V("v_mov_b32", self.vzero, 0)]
        if not A:
            z4 = VReg("z4", 4)
            skip = self.label("nozero")
            P += [V("v_mov_b32", z4[k], 0) for k in range(4)]
            P += [S(f"s_mul_i32 {s_t0}, {s_j}, {ZBLK}"), S(f"s_add_u32 {s_t0}, {s_t0}, {WS_Z}"),
                  S(f"s_lshl_b32 {s_t1}, {s_w}, 10"), S(f"s_add_u32 {s_t1}, {s_t1}, {s_t0}"),
                  S(f"s_add_u32 {s_t0}, {s_t0}, 8192"),
                  S(f"s_cmp_lg_u32 {s_rb}, 0"), S(f"s_cbranch_scc1 {skip}"),
                  BSTORE("buffer_store_dwordx4", z4, self.vl16, SW, s_t1, 0, "sc1", counted=False),
                  BSTORE("buffer_store_dwordx4", z4, self.vl16, SW, s_t0, 0, "sc1", counted=False), LABEL(skip)]
        if OPT.get("touch", 0) & 2 and OPT.get("tb", 0) == 0:
            P += self.touch("b")
        for it in pre[2:4]:
            P += self.dma_item(it, slot_of[it])
        if OPT.get("touch", 0) & 2 and OPT.get("tb", 0) == 1:
            P += self.touch("b")
        gx, gw, ga = VReg("gx", 4), VReg("gw", 4), VReg("ga")
        P += [S(f"s_lshl_b32 {s_t0}, {s_rb}, 7"), S(f"s_lshl_b32 {s_t1}, {s_cg}, 3"), S(f"s_add_u32 {s_t0}, {s_t0}, {s_t1}"),
              S(f"s_add_u32 {s_t0}, {s_t0}, {s_w}"), S(f"s_lshl_b32 {s_t1}, {s_t0}, 10"),
              V("v_add_u32", ga, s_t1, self.vl16),
              GLOAD("global_load_dwordx4", gx, ga, sX), GLOAD("global_load_dwordx4", gw, self.vl16, sGW),
              S(f"s_lshl_b32 {s_ph}, {s_t0}, 2"), S(f"s_add_u32 {s_ph}, {s_ph}, {WS_G}")]
        if A:
            wr = [VReg("wr") for _ in range(8)]
            wa = VReg("wa")
            P += [S(f"s_lshl_b32 {s_t0}, {s_j}, 2"), S(f"s_lshl_b32 {s_t1}, {s_c}, 1"), S(f"s_add_u32 {s_t0}, {s_t0}, {s_t1}"),
                  S(f"s_lshl_b32 {s_t0}, {s_t0}, 9")]
            P += self.field(wa, [(2, 1, 9), (3, 2, 3), (0, 2, 1), (5, 1, 7)], init=s_t0)
            for k in range(8):
                P.append(GLOAD("global_load_ushort", wr[k], wa, sPHI, 256 * (k >> 2) + 32 * (k & 3)))
        for it in pre[4:]:
            P += self.dma_item(it, slot_of[it])
        P += [S(f"s_mov_b32 {s_L}, 0x3fb8aa3b"), S(f"s_mov_b32 {s_nL}, 0xbfb8aa3b")]
        P += [S(f"s_lshl_b32 {s_t0}, {s_cb}, 7")] + self.srd(SD, sWD, s_t0, 1835008) + self.srd(SO, sWO, s_t0, 524288)
        P += [S(f"s_lshl_b32 {s_t1}, {s_rb2}, 16"), S(f"s_add_u32 {s_t0}, {s_t0}, {s_t1}")] + self.srd(SOUT, sOUTP, s_t0, 2097152)
        P += [S(f"s_lshr_b32 {s_t0}, {s_w}, 1"), S(f"s_mul_i32 {s_t0}, {s_t0}, 320"), S(f"s_and_b32 {s_t1}, {s_w}, 1"),
              S(f"s_mul_i32 {s_R1}, {s_t1}, 192"), S(f"s_add_u32 {s_R1}, {s_R1}, {s_t0}"), S(f"s_add_u32 {s_R1}, {s_R1}, 512"),
              S(f"s_lshl_b32 {s_R1}, {s_R1}, 10"),
              S(f"s_lshl_b32 {s_R3h}, {s_t1}, 5"), S(f"s_add_u32 {s_R3h}, {s_R3h}, {s_t0}"), S(f"s_add_u32 {s_R3h}, {s_R3h}, 640"),
              S(f"s_lshl_b32 {s_R3h}, {s_R3h}, 10"), S(f"s_lshl_b32 {s_R3}, {s_w}, 16")]
        P += [S(f"s_lshl_b32 {s_t0}, {s_rb}, 2"), S(f"s_add_u32 {s_t0}, {s_t0}, {s_r}"), S(f"s_mul_i32 {s_t0}, {s_t0}, 144"),
              S(f"s_add_u32 {s_t0}, {s_t0}, {s_j}"), S(f"s_lshl_b32 {s_t0}, {s_t0}, 10"),
              S(f"s_lshl_b32 {s_t1}, {s_c}, 13"), S(f"s_add_u32 {s_hst1}, {s_t0}, {s_t1}"),
              S(f"s_add_u32 {s_hst2}, {s_hst1}, {s_t1}"),
              S(f"s_lshl_b32 {s_t0}, {s_rb2}, 1"), S(f"s_add_u32 {s_t0}, {s_t0}, {s_c}"), S(f"s_mul_i32 {s_t0}, {s_t0}, 144"),
              S(f"s_lshl_b32 {s_t1}, {s_r}, 1"), S(f"s_add_u32 {s_t0}, {s_t0}, {s_t1}"), S(f"s_lshl_b32 {s_hld}, {s_t0}, 10")]
        def f2off(dst, rbreg):
            return [S(f"s_lshr_b32 {s_t0}, {rbreg}, 1"), S(f"s_mul_i32 {s_t0}, {s_t0}, {ZBLK}"),
                    S(f"s_and_b32 {s_t1}, {rbreg}, 1"), S(f"s_lshl_b32 {s_t1}, {s_t1}, 7"),
                    S(f"s_add_u32 {s_t0}, {s_t0}, {s_t1}"), S(f"s_add_u32 {dst}, {s_t0}, {WS_Z + 8832}")]
        P += f2off(s_f2sig, s_rb) + [S(f"s_lshr_b32 {s_t2}, {s_rb2}, 1")] + f2off(s_f2wait, s_t2)
        if A:
            P += [S(f"s_mul_i32 {s_t0}, {s_j}, {ZBLK}"), S(f"s_add_u32 {s_t0}, {s_t0}, {WS_Z}"),
                  S(f"s_add_u32 {s_f1}, {s_t0}, 8704"),
                  S(f"s_mul_i32 {s_t1}, {s_r}, 2176"), S(f"s_add_u32 {s_tat}, {s_t0}, {s_t1}"),
                  S(f"s_lshl_b32 {s_t1}, {s_c}, 6"), S(f"s_add_u32 {s_tat}, {s_tat}, {s_t1}"),
                  S(f"s_mul_i32 {s_t1}, {s_c}, 4352"), S(f"s_add_u32 {s_tld}, {s_t0}, {s_t1}")]
        bx = [VReg(f"bx{i}") for i in range(4)]
        P += [S(f"s_lshl_b32 {s_t0}, {s_r}, 12")] + self.field(bx[0], [(0, 5, 7)], init=s_t0)
        P += [V("v_bfe_u32", t, lane, 1, 3), V("v_lshrrev_b32", t2, 5, lane), V("v_xor_b32", t, t, t2),
              V("v_lshl_add_u32", bx[0], t, 4, bx[0])]
        P += [V("v_xor_b32", bx[i], 32 * i, bx[0]) for i in range(1, 4)]
        bgu = [VReg("bgu0", long=True), VReg("bgu1", long=True)]
        gu_base = self.field(bgu[0], [(5, 1, 11), (4, 1, 10), (2, 2, 7), (0, 2, 3), (3, 2, 5)])
        gu_base += [S(f"s_lshl_b32 {s_t0}, {s_c}, 6"), V("v_xor_b32", bgu[0], s_t0, bgu[0]), V("v_xor_b32", bgu[1], 32, bgu[0])]
        if A:
            bkv = VReg("bkv")
            P += self.field(bkv, [(5, 1, 11), (2, 2, 7), (3, 1, 6), (4, 1, 5), (0, 2, 3)])
            P += [S(f"s_lshl_b32 {s_t0}, {s_c}, 6"), V("v_xor_b32", bkv, s_t0, bkv)]
        else:
            P += gu_base
        P += self.stamp()

        X = [VReg(f"X{k}", 4, long=True) for k in range(32)]
        M = self.main

        def add_slot(reads, mf):
            M.append((reads, mf))

        accs = {}
        bgh = VReg("bgh")
        bw2 = [VReg("bw20"), VReg("bw21")]
        Hf = {(ch, e): VReg(f"H{ch}_{e}", 4) for ch in range(18) for e in range(2)}
        accH = [VReg("accH0", 16), VReg("accH1", 16)]
        accO = [VReg("accO0", 16), VReg("accO1", 16)]
        for tstep, its in enumerate(steps):
            self.first[tstep] = len(M)
            kind, i = its[-1]
            sb = slot_of[its[-1]] * SLOT
            if kind in ("kv", "g0", "g1"):
                if i == 0:
                    accs[kind] = [VReg(kind + "a0", 16), VReg(kind + "a1", 16)]
                for ks in range(4):
                    xr = []
                    k = 4 * i + ks
                    if tstep < 8:
                        fix, imm = self.lds(bx[ks], slot_of[its[0]] * SLOT)
                        xr = fix + [DSR("ds_read_b128", X[k], bx[ks], imm)]
                    for tt in range(2):
                        if kind == "kv":
                            f, rd = self.trfrag(bkv, sb + ks * 4096 + tt * 1024, 512)
                        else:
                            f, rd = self.trfrag(bgu[tt], sb + ks * 4096, 512)
                        a = accs[kind][tt]
                        add_slot((xr if tt == 0 else []) + rd, MFMA(32, a, f, X[k], a if k else 0))
            elif kind == "q":
                if i == 0:
                    accs["q"] = VReg("qa", 16)
                for ks in range(8):
                    k = 8 * i + ks
                    f, rd = self.trfrag(bkv, sb + (ks & 3) * 4096 + (ks >> 2) * 1024, 512)
                    add_slot(rd, MFMA(32, accs["q"], f, X[k], accs["q"] if k else 0))
            elif kind == "gh":
                if i == 0:
                    accs["gh"] = VReg("gha", 16)
                for ks in range(8):
                    k = 8 * i + ks
                    f, rd = self.trfrag(bgh, sb + ks * 2048, 256)
                    add_slot(rd, MFMA(32, accs["gh"], f, X[k], accs["gh"] if k else 0))
            else:
                for e in range(2):
                    for nt in range(2):
                        f, rd = self.trfrag(bw2[nt], sb + e * 2048, 1024)
                        a = (accH if i < 14 else accO)[nt]
                        fresh = e == 0 and i in (0, 14)
                        add_slot(rd, MFMA(32, a, f, Hf[(i, e)], 0 if fresh else a))
        self.first[len(steps)] = len(M)
        F = self.first

        def bar(tstep):
            return F[tstep + 1] - D

        gs = VReg("gs")
        g = [V("v_mov_b32", gs, 0)]
        g += [V("v_dot2_f32_bf16", gs, gx[k], gw[k], gs) for k in range(4)]
        for sfx in ("row_shr:1", "row_shr:2", "row_shr:4", "row_shr:8"):
            g.append(V("v_add_f32", gs, gs, gs, suffix=sfx + " row_mask:0xf bank_mask:0xf bound_ctrl:0"))
        g.append(V("v_add_f32", gs, gs, gs, suffix="row_bcast:15 row_mask:0xa bank_mask:0xf", rmw=True))
        g.append(V("v_add_f32", gs, gs, gs, suffix="row_bcast:31 row_mask:0xc bank_mask:0xf", rmw=True))
        g.append([RL(s_side, gs, 63), V("v_mov_b32", gs, s_side)])
        g += [V("v_mul_f32", gs, s_nL, gs), V("v_exp_f32", gs, gs), V("v_add_f32", gs, 1.0, gs), V("v_rcp_f32", gs, gs),
              BSTORE("buffer_store_dword", gs, self.vzero, SW, s_ph, 0, "sc1", "gate")]
        self.place(g, F[2], F[3] - 1)

        def hload(ch):
            c0, mask = (ch & ~3, 3) if ch < 12 else (12, 1) if ch < 14 else (14, 3)
            return self.rot(s_side, s_rot2, ch - c0, mask, 8192, c0 * 8192, s_hld) + [
                    BLOAD("buffer_load_dwordx4", Hf[(ch, 0)], self.vl16, SW, s_side, 0, "sc1"),
                    BLOAD("buffer_load_dwordx4", Hf[(ch, 1)], self.vl16, SW, s_side, 1024, "sc1")]

        w2base = self.field(bw2[0], [(5, 1, 9), (2, 2, 7), (3, 1, 6), (4, 1, 5), (0, 2, 3)])
        w2base = [w2base + [S(f"s_lshl_b32 {s_side}, {s_r}, 12"), V("v_add_u32", bw2[0], s_side, bw2[0]),
                            V("v_xor_b32", bw2[1], 64, bw2[0])]]
        P2 = 20
        if A:
            self.A0, self.A1 = VReg("A0", 4, long=True), VReg("A1", 4, long=True)
            g = [V("v_lshl_or_b32", wr[2 * k], wr[2 * k + 1], 16, wr[2 * k]) for k in range(4)]
            tm = VReg("tm")
            g.append([V("v_and_b32", tm, 4, lane), VCMP("v_cmp_eq_u32", s_mask, 0, tm)])
            g += [V("v_cndmask_b32", self.A0[k], 0, wr[2 * k], s_mask) for k in range(4)]
            g += [V("v_cndmask_b32", self.A1[k], wr[2 * k], 0, s_mask) for k in range(4)]
            self.place(g, F[3], F[4] - 1)
            PH0, PH1, VB = xslots[0] * SLOT, xslots[1] * SLOT, xslots[2] * SLOT
            kacc, vacc = accs["kv"]
            pk, nh = self.phi_epi(kacc)
            va = VReg("va")
            vg_ = [[S(f"s_lshl_b32 {s_side}, {s_r}, 12"), S(f"s_add_u32 {s_side}, {s_side}, {VB}")]
                   + self.field(va, [(0, 5, 7), (3, 1, 6), (1, 1, 5), (2, 1, 4), (0, 1, 3)], init=s_side)]
            tv = VReg("tv")
            vg_.append([V("v_lshrrev_b32", tv, 5, lane), V("v_lshlrev_b32", tv, 3, tv), V("v_xor_b32", va, tv, va),
                        S(f"s_lshl_b32 {s_side}, {s_c}, 6"), V("v_xor_b32", va, s_side, va)])
            for qq in range(4):
                vg_ += [V("v_cvt_pk_bf16_f32", vacc[4 * qq], vacc[4 * qq], vacc[4 * qq + 1]),
                        V("v_cvt_pk_bf16_f32", vacc[4 * qq + 1], vacc[4 * qq + 2], vacc[4 * qq + 3]),
                        DSW("ds_write_b64", va, vacc[4 * qq:4 * qq + 2], 0)]
                if qq < 3:
                    vg_.append(V("v_xor_b32", va, 16 * (qq ^ (qq + 1)), va))
            pa = VReg("pa")
            pw = [[S(f"s_mov_b32 {s_side}, {(PH1 - 16384) & 0xffffffff}"), S(f"s_cmp_lt_u32 {s_r}, 2"), S(f"s_cselect_b32 {s_side}, {PH0}, {s_side}"),
                   S(f"s_lshl_b32 {s_t2}, {s_r}, 13"), S(f"s_add_u32 {s_side}, {s_side}, {s_t2}")]
                  + self.field(pa, [(0, 5, 8), (3, 1, 7), (1, 1, 6), (0, 1, 5), (2, 1, 4)], init=s_side)]
            tp = VReg("tp")
            pw.append([V("v_lshrrev_b32", tp, 5, lane), V("v_lshlrev_b32", tp, 6, tp), V("v_xor_b32", pa, tp, pa),
                       S(f"s_lshl_b32 {s_side}, {s_c}, 7"), V("v_xor_b32", pa, s_side, pa)])
            for qq in range(4):
                pw.append(DSW("ds_write_b128", pa, kacc[4 * qq:4 * qq + 4], 0))
                if qq < 3:
                    pw.append(V("v_xor_b32", pa, 16 * (qq ^ (qq + 1)), pa))
            e0, e1 = OPT.get("kve0", 8), OPT.get("kve1", 12)
            self.place(vg_ + pk + pw, F[e0], bar(e1) - 1)
            f0i, f0c = self.poll_f0()
            self.place([f0i], F[e1], F[e1])
            r1, r2, r3, r4 = VReg("rp1"), VReg("rp2"), VReg("rv1"), VReg("rv2")
            ta = VReg("ta")
            kv = [self.field(r1, [(2, 2, 8), (4, 2, 11), (4, 1, 7), (3, 1, 6), (2, 1, 5), (0, 1, 3)])
                  + [V("v_bfe_u32", ta, lane, 1, 1), V("v_lshlrev_b32", ta, 4, ta), V("v_xor_b32", r1, ta, r1),
                     S(f"s_lshl_b32 {s_side}, {s_r}, 6"), S(f"s_lshl_b32 {s_t2}, {s_c}, 5"),
                     S(f"s_add_u32 {s_side}, {s_side}, {s_t2}"), V("v_xor_b32", r1, s_side, r1), V("v_xor_b32", r2, 16, r1)]]
            kv.append(self.field(r3, [(2, 2, 7), (4, 2, 10), (4, 1, 6), (3, 1, 5), (2, 1, 3)])
                      + [V("v_and_b32", ta, 3, lane), V("v_lshlrev_b32", ta, 3, ta), V("v_xor_b32", r3, ta, r3),
                         S(f"s_lshl_b32 {s_side}, {s_r}, 5"), V("v_xor_b32", r3, s_side, r3), V("v_xor_b32", r4, 16, r3)])
            ones = VReg("ones", 4)
            kv += [V("v_mov_b32", ones[k], 0x3F803F80) for k in range(4)]
            D1, D2 = VReg("D1", 4), VReg("D2", 4)
            fr = []
            for m in range(4):
                fp, fv = VReg("fp", 4), VReg("fv", 4)
                pb = (PH0 if m < 2 else PH1) + (m & 1) * 8192
                for reg, dst, addr in ((r1, fp[0:2], pb), (r2, fp[2:4], pb + 1024), (r3, fv[0:2], VB + m * 4096),
                                       (r4, fv[2:4], VB + m * 4096 + 512)):
                    fix, imm = self.lds(reg, addr)
                    kv.append(fix + [DSR("ds_read_b64_tr_b16", dst, reg, imm)])
                fr.append((fp, fv))
                if m:
                    kv += [MFMA(16, D1, fr[m - 1][1], fr[m - 1][0], D1 if m > 1 else 0),
                           MFMA(16, D2, ones, fr[m - 1][0], D2 if m > 1 else 0)]
            kv += [MFMA(16, D1, fr[3][1], fr[3][0], D1), MFMA(16, D2, ones, fr[3][0], D2)]
            aa = VReg("aa")
            kv.append(self.field(aa, [(4, 2, 9), (0, 4, 2)]))
            kv.append(f0c)
            kv += [BSTORE("buffer_atomic_add_f32", D1[k], aa, SW, s_tat, 128 * k, "", "kvat") for k in range(4)]
            kv.append([S("s_mov_b64 exec, 0xffff"), BSTORE("buffer_atomic_add_f32", D2[0], aa, SW, s_tat, 2048, "", "kvat"),
                       S("s_mov_b64 exec, -1")])
            assert release_at >= e1 + 1
            self.place(kv, bar(e1), bar(release_at) - 1)
            self.place([gu_base], F[6], F[6])
            tf1 = OPT.get("f1sig", 16)
            self.prebar.setdefault(tf1, []).append("kvat")
            self.place([self.signal(s_f1, 1)], bar(tf1), bar(tf1))
            qacc = accs["q"]
            pq, nh = self.phi_epi(qacc)
            for e in range(2):
                for k in range(4):
                    pq.append(SWAP32(qacc[8 * e + k], qacc[8 * e + 4 + k]))
            qe = OPT.get("qe", 4)
            self.place(pq, F[P2], F[P2 + qe] - 1)
            gu = self.gu_epi(accs["g0"][0], s_hst2, 8, "S2") + self.gu_epi(accs["g0"][1], s_hst2, 9, "S2")
            self.place(gu, F[16], F[18] + OPT.get("gue", 3))
            f1i, f1c = self.poll_cnt(s_f1, 0, 16)
            self.place([f1i], F[P2], F[P2])
            tva = VReg("tva")
            og = [f1c, [V("v_and_b32", tva, 31, lane), V("v_min_u32", tva, 16, tva), V("v_lshlrev_b32", tva, 7, tva)]
                  + self.field(tva, [(5, 1, 5)], init=tva)]
            Traw = {}
            for hh in range(2):
                for e in range(2):
                    Traw[hh, e] = VReg("Traw", 8)
                    for half in range(2):
                        og.append(BLOAD("buffer_load_dwordx4", Traw[hh, e][4 * half:4 * half + 4], tva, SW, s_tld,
                                        hh * 2176 + 64 * e + 16 * half, "sc1"))
            self.place(og, F[P2 + 1], F[P2 + 2] - 1)
            og = []
            Os = []
            for hh in range(2):
                O = VReg("O", 16)
                Os.append(O)
                for e in range(2):
                    T = Traw[hh, e]
                    og += [V("v_cvt_pk_bf16_f32", T[k], T[2 * k], T[2 * k + 1]) for k in range(4)]
                for e in range(2):
                    og.append(MFMA(32, O, Traw[hh, e][0:4], qacc[8 * e + 4 * hh:8 * e + 4 * hh + 4], O if e else 0))
            for hh in range(2):
                O = Os[hh]
                og += [V("v_add_f32", O[8], 0x358637BD, O[8]), V("v_rcp_f32", O[8], O[8])]
                og += [V("v_mul_f32", O[k], O[8], O[k]) for k in range(8)]
                og += [V("v_cvt_pk_bf16_f32", O[k], O[2 * k], O[2 * k + 1]) for k in range(4)]
                og.append([S(f"s_add_u32 {s_side}, {s_hst2}, {(14 + hh) * 8192}"),
                           BSTORE("buffer_store_dwordx4", O[0:4], self.vl16, SW, s_side, 0, "sc1", "S4")])
            self.place(og, F[P2 + qe], F[P2 + qe + 2] - 2)
            ts2, ts4 = OPT.get("s2", 19), P2 + qe + OPT.get("s4", 3)
            self.prebar.setdefault(ts2, []).extend(["S2", "gate"])
            self.place([self.signal(s_f2sig, 1 << 8)], bar(ts2), bar(ts2))
            self.prebar.setdefault(ts4, []).append("S4")
            self.place([self.signal(s_f2sig, 1 << 24)], bar(ts4), bar(ts4))
        else:
            skip = self.label("nof0")
            tz, tz2 = VReg("tz"), VReg("tz2")
            self.place([[V("v_mov_b32", tz, 1), S(f"s_lshl_b32 {s_side}, {s_j}, 2"), V("v_mov_b32", tz2, s_side),
                         S(f"s_or_b32 {s_side}, {s_rb}, {s_w}"), S(f"s_cmp_lg_u32 {s_side}, 0"), S(f"s_cbranch_scc1 {skip}"),
                         GSTORE("global_store_dword", tz2, tz, sDBG, 0, "sc1", counted=False), LABEL(skip)]], bar(0), bar(0))
            self.vgh, self.vuh = VReg("vgh"), VReg("vuh")
            th = VReg("th")
            self.half_setup = [[V("v_lshrrev_b32", th, 2, lane), S(f"s_movk_i32 {s_side}, 3584"),
                                V("v_mul_u32_u24", self.vgh, s_side, th)] + self.field(self.vgh, [(0, 2, 4)], init=self.vgh)
                               + [V("v_xor_b32", self.vuh, 32, self.vgh)] + self.half_srd()]
            tg = min(t_ for t_, l_ in issue_at.items() if ("gh", 0) in l_)
            assert all(it[0] not in ("g0", "g1") for t_, l_ in issue_at.items() if t_ >= tg for it in l_)
            self.place(self.half_setup, bar(tg) - 1, bar(tg) - 1)
            g = self.field(bgh, [(4, 1, 10), (5, 1, 9), (2, 2, 6), (4, 1, 5), (0, 2, 3)])
            self.place([g + [S(f"s_lshl_b32 {s_side}, {s_c}, 5"), V("v_xor_b32", bgh, s_side, bgh)]], F[14], F[14])
            gu = self.gu_epi(accs["g0"][0], s_hst2, 0, "S1") + self.gu_epi(accs["g0"][1], s_hst2, 1, "S1")
            self.place(gu, F[8], F[11] - 1)
            f0i, f0c = self.poll_f0()
            self.place([f0i], F[10], F[10])
            self.place([f0c], F[12], F[12])
            self.prebar.setdefault(12, []).append("S1")
            self.place([self.signal(s_f2sig, 1)], bar(12), bar(12))
            gu = self.gu_epi(accs["g1"][0], s_hst2, 4, "S2") + self.gu_epi(accs["g1"][1], s_hst2, 5, "S2")
            self.place(gu, F[16], F[18] + OPT.get("gue", 3))
            ts2 = OPT.get("s2", 19)
            self.prebar.setdefault(ts2, []).extend(["S2", "gate"])
            self.place([self.signal(s_f2sig, 1 << 8)], bar(ts2), bar(ts2))
            gu = self.gu_epi(accs["gh"], s_hst1, 12, "S3")
            self.place(gu, F[P2], F[P2 + 1] - 1)
            ts3 = P2 + OPT.get("s3b", 2)
            self.prebar.setdefault(ts3, []).append("S3")
            self.place([self.signal(s_f2sig, 1 << 16)], bar(ts3), bar(ts3))
        if OPT.get("touch", 0) & 4:
            for key, tt in zip("cdefg", (OPT.get("tc", 1), OPT.get("td", 2), OPT.get("te", 4), OPT.get("tf", 5), OPT.get("tg", 6))):
                g = self.touch(key)
                if g:
                    self.place([g], F[tt], F[tt])
        self.place([[KEEP(self.vdummy)]], F[12], F[12])
        self.place(w2base, F[18], F[18])
        c2, c3, c4 = P2 + OPT.get("c2", 2), P2 + OPT.get("c3", 8), P2 + OPT.get("c4", 11)
        sets = [(0, 8, range(0, 4), 17, 18), (8, 16, range(4, 12), c2 - 1, c2), (16, 8, range(12, 14), c3 - 1, c3),
                (24, 8, range(14, 18), c4 - 1, c4)]
        for shift, want, chs, t_issue, t_chk in sets:
            pi, pc = self.poll_cnt(s_f2wait, shift, want)
            self.place([pi], F[t_issue], F[t_issue])
            self.place([pc], F[t_chk], F[t_chk])
            n = len(chs)
            self.place([hload(ch) for ch in chs], F[t_chk] + 1, F[t_chk] + 2 * n)
        gv, ga2 = VReg("gv"), VReg("ga2")
        self.place([[S(f"s_lshl_b32 {s_side}, {s_rb2}, 1"), S(f"s_add_u32 {s_side}, {s_side}, {s_c}"),
                     S(f"s_lshl_b32 {s_side}, {s_side}, 7"), S(f"s_add_u32 {s_side}, {s_side}, {WS_G}")]
                    + self.field(ga2, [(0, 5, 2)]) + [BLOAD("buffer_load_dword", gv, ga2, SW, s_side, 0, "sc1")]],
                   F[P2 + 10] + 1, F[P2 + 10] + 1)
        og_ = VReg("omg")
        g = [V("v_sub_f32", og_, 1.0, gv)]
        for nt in range(2):
            g += [V("v_mul_f32", accH[nt][k], og_, accH[nt][k]) for k in range(16)]
        self.place(g, F[P2 + 15], F[P2 + 17] - 1)

        last = slot_of[("w2", 17)]
        RB = 0 if last >= 5 else 163840 - 69632
        assert not (RB <= last * SLOT < RB + 69632) and not (RB < (last + 1) * SLOT <= RB + 69632)
        T = self.tail
        wa_, ra_, oa_ = VReg("redw"), VReg("redr"), VReg("outa")
        tr = VReg("tr")
        setup = [S(f"s_mul_i32 {s_side}, {s_w}, 8704"), S(f"s_add_u32 {s_side}, {s_side}, {RB}"),
                 V("v_and_b32", tr, 31, lane), S(f"s_movk_i32 {s_t2}, 272"), V("v_mul_u32_u24", wa_, s_t2, tr),
                 V("v_add_u32", wa_, s_side, wa_)] + self.field(wa_, [(5, 1, 4)], init=wa_)
        setup += [S(f"s_mul_i32 {s_side}, {s_c}, {4 * 8704}"), S(f"s_mul_i32 {s_t1}, {s_r}, {8 * 272}"),
                  S(f"s_add_u32 {s_side}, {s_side}, {s_t1}"), S(f"s_add_u32 {s_side}, {s_side}, {RB}"),
                  V("v_lshrrev_b32", tr, 4, lane), V("v_mul_u32_u24", ra_, s_t2, tr), V("v_add_u32", ra_, s_side, ra_)]
        setup += self.field(ra_, [(0, 4, 4)], init=ra_)
        setup += [S(f"s_lshl_b32 {s_side}, {s_w}, 13")] + self.field(oa_, [(4, 2, 10), (0, 4, 3)], init=s_side)
        self.place([setup], F[P2 + 16], F[P2 + 16])
        T.append("STAMP")
        for nt in range(2):
            for qq in range(4):
                T += [V("v_fmac_f32", accH[nt][4 * qq + k], gv, accO[nt][4 * qq + k]) for k in range(4)]
                T.append(DSW("ds_write_b128", wa_, accH[nt][4 * qq:4 * qq + 4], 128 * nt + 32 * qq))
        T += [WAITLGKM(), BAR()]
        parts = {}
        for i in range(2):
            for kq in range(4):
                parts[i, kq] = VReg("part", 4)
                T.append(DSR("ds_read_b128", parts[i, kq], ra_, kq * 8704 + i * 4 * 272))
        for i in range(2):
            for k in range(4):
                T.append(V("v_add_f32", parts[i, 0][k], parts[i, 0][k], parts[i, 1][k]))
                T.append(V("v_add_f32", parts[i, 2][k], parts[i, 2][k], parts[i, 3][k]))
            for k in range(4):
                T.append(V("v_add_f32", parts[i, 0][k], parts[i, 0][k], parts[i, 2][k]))
            T += [V("v_cvt_pk_bf16_f32", parts[i, 0][0], parts[i, 0][0], parts[i, 0][1]),
                  V("v_cvt_pk_bf16_f32", parts[i, 0][1], parts[i, 0][2], parts[i, 0][3])]
            if i:
                T.append(S(f"s_movk_i32 {s_side}, 4096"))
            T.append(BSTORE("buffer_store_dwordx2", parts[i, 0][0:2], oa_, SOUT, s_side if i else 0))
        if OPT["stamp"]:
            T += [WAITALL(), "STAMP"]
            sa = VReg("sa")
            T += [S(f"s_lshl_b32 {s_side}, s2, 3"), S(f"s_add_u32 {s_side}, {s_side}, {s_w}"), S(f"s_lshl_b32 {s_side}, {s_side}, 8"),
                  S(f"s_add_u32 {s_side}, {s_side}, {WS_STAMP}"), V("v_lshlrev_b32", sa, 2, lane),
                  BSTORE("buffer_store_dword", self.vst, sa, SW, s_side)]
            if "ea" in OPT:
                lp = self.label("echo")
                T += [RL(s_t0, self.vst, OPT["ea"]), RL(s_t1, self.vst, OPT["eb"]), RL(s_t2, self.vst, 42),
                      S(f"s_sub_u32 {s_t0}, {s_t1}, {s_t0}"), S(f"s_mul_i32 {s_t0}, {s_t0}, {OPT.get('em', 4)}"),
                      S(f"s_min_u32 {s_t0}, {s_t0}, 100000"), LABEL(lp), S(f"s_memrealtime {s_ts}"), S("s_waitcnt lgkmcnt(0)"),
                      S(f"s_sub_u32 s94, s94, {s_t2}"), S(f"s_cmp_lt_u32 s94, {s_t0}"), S(f"s_cbranch_scc1 {lp}")]
            if OPT.get("dbgt", 0):
                d1, d2 = VReg("d1"), VReg("d2")
                for k, (idx, inv) in enumerate([(0, 1), (0, 0), (3, 0), (11, 0), (23, 0), (31, 0), (41, 0), (42, 0)]):
                    T += [RL(s_side, self.vst, idx)]
                    if inv:
                        T += [S(f"s_not_b32 {s_side}, {s_side}")]
                    T += [V("v_mov_b32", d1, s_side), V("v_mov_b32", d2, 32 + 4 * k), S("s_mov_b64 exec, 1"),
                          GSTORE("global_atomic_umax", d2, d1, sDBG), S("s_mov_b64 exec, -1")]

        out = list(P)
        out += [WAITVM(*steps[0]), BAR()] + self.stamp_issue()
        for m in range(D):
            out += M[m][0]
        step_at = {F[tt + 1] - D: tt for tt in range(len(steps) - 1)}
        pend = []
        for m in range(len(M)):
            if m in step_at:
                tt = step_at[m]
                out.append(COMMENT(f"---- end of step {tt}"))
                out += [WAITLGKM()] + self.stamp_collect()
                out += [WAITVM(*(steps[tt + 1] + self.prebar.get(tt, []))), BAR()] + self.stamp_issue()
                pend = [self.dma_item(it, slot_of[it]) for it in issue_at[tt]]
            if m + D < len(M):
                out += M[m + D][0]
            out.append(M[m][1])
            if pend:
                out += pend.pop(0)
            for g in self.side.get(m, []):
                out += g
        for x in T:
            if x == "STAMP":
                out += ([WAITLGKM()] + self.stamp_collect() if OPT["stamp"] else []) + self.stamp()
            else:
                out.append(x)
        out.append(S("s_endpgm"))
        return out

    def text(self):
        prog = self.build()
        prog, peak = finish(prog, 256)
        lines = [i.text() for i in prog]
        for slow, back, fn in self.slow:
            loop = slow + "_l"
            lines += [f"{slow}:", f"    s_mov_b32 {s_spin}, {OPT['spin']}", f"{loop}:"]
            lines += ["    " + x for x in fn()]
            lines += [f"    s_cbranch_scc1 {back}", "    s_sleep 1", f"    s_sub_u32 {s_spin}, {s_spin}, 1",
                      f"    s_cmp_lg_u32 {s_spin}, 0", f"    s_cbranch_scc1 {loop}", f"    s_branch {back}"]
        n = {}
        for i in prog:
            n[i.kind] = n.get(i.kind, 0) + 1
        print(self.typ, "peak vgpr", peak, n, file=sys.stderr)
        print(self.typ, "issue_at", {k: [f"{a}{b}@{self.slot_of[(a, b)]}" for a, b in v] for k, v in self.issue_at.items() if v},
              file=sys.stderr)
        return "\n".join(lines)


def main():
    ref = open(f"cdna_kernels/{NAME}.s.ref").read().splitlines()
    head = [l for l in ref if l.startswith(";") and "@launch" not in l]
    o = head + ["; @launch grid=(256,1,1) block=(512,1,1) lds=163840",
                '.amdgcn_target "amdgcn-amd-amdhsa--gfx950"', ".text", f".globl {NAME}_kernel", ".p2align 8",
                f".type {NAME}_kernel,@function", f"{NAME}_kernel:"]
    if OPT["stamp"]:
        o.append("    " + ("s_memrealtime" if OPT["stamp"] == 1 else "s_memtime") + " s[96:97]")
    o += ["    " + x for x in f"""s_cmp_ge_u32 s2, 256
s_cbranch_scc1 L_exit
s_load_dwordx16 s[4:19], s[0:1], 0
s_load_dwordx8 s[20:27], s[0:1], 64
s_and_b32 {s_t0}, s2, 7
s_lshr_b32 {s_t1}, s2, 3
s_and_b32 {s_rb}, {s_t0}, 1
s_lshl_b32 {s_rb}, {s_rb}, 3
s_and_b32 {s_t2}, {s_t1}, 7
s_add_u32 {s_rb}, {s_rb}, {s_t2}
s_lshr_b32 {s_cg}, {s_t0}, 1
s_lshl_b32 {s_cg}, {s_cg}, 2
s_lshr_b32 {s_t2}, {s_t1}, 3
s_add_u32 {s_cg}, {s_cg}, {s_t2}
s_lshr_b32 {s_j}, {s_cg}, 1
s_lshl_b32 {s_rb2}, {s_t0}, 2
s_and_b32 {s_t2}, {s_t1}, 3
s_add_u32 {s_rb2}, {s_rb2}, {s_t2}
s_lshr_b32 {s_cb}, {s_t1}, 2
s_bitcmp1_b32 {s_cg}, 0
s_cbranch_scc1 L_typeB""".splitlines()]
    o.append(Prog("A").text())
    o.append("L_exit:\n    s_endpgm")
    o.append(".p2align 6\nL_typeB:")
    o.append(Prog("B").text())
    o.append(f""".section .rodata,"a"
.p2align 6
.amdhsa_kernel {NAME}_kernel
  .amdhsa_next_free_vgpr 256
  .amdhsa_next_free_sgpr 102
  .amdhsa_accum_offset 256
  .amdhsa_group_segment_fixed_size 0
  .amdhsa_kernarg_size 96
  .amdhsa_user_sgpr_count 2
  .amdhsa_user_sgpr_kernarg_segment_ptr 1
  .amdhsa_system_sgpr_workgroup_id_x 1
.end_amdhsa_kernel""")
    open(sys.argv[1], "w").write("\n".join(o) + "\n")


main()
```

```python
import re


class VReg:
    def __init__(self, name, n=1, align=None, fixed=None, long=False):
        self.name, self.n = name, n
        self.align = align if align else (1 if n == 1 else 2 if n < 4 else 4)
        self.phys = fixed
        self.fixed = fixed is not None
        self.long = long
        self.bias = 0

    def __getitem__(self, i):
        if isinstance(i, slice):
            a = i.start or 0
            b = self.n if i.stop is None else i.stop
            assert 0 <= a < b <= self.n, (self.name, a, b)
            return Ref(self, a, b - a)
        assert 0 <= i < self.n, (self.name, i)
        return Ref(self, i, 1)

    def ref(self):
        return Ref(self, 0, self.n)


class Ref:
    def __init__(self, reg, off, cnt):
        self.reg, self.off, self.cnt = reg, off, cnt

    def __getitem__(self, i):
        if isinstance(i, slice):
            a = i.start or 0
            b = self.cnt if i.stop is None else i.stop
            assert 0 <= a < b <= self.cnt
            return Ref(self.reg, self.off + a, b - a)
        assert 0 <= i < self.cnt
        return Ref(self.reg, self.off + i, 1)

    def regs(self):
        b = self.reg.phys + self.off
        return range(b, b + self.cnt)

    def text(self):
        b = self.reg.phys + self.off
        if self.cnt == 1:
            return f"v{b}"
        assert b % 2 == 0, (self.reg.name, b)
        return f"v[{b}:{b + self.cnt - 1}]"


class Neg:
    def __init__(self, r):
        self.r = rf(r)


def rf(x):
    return x.ref() if isinstance(x, VReg) else x


def optext(x):
    if isinstance(x, Ref):
        return x.text()
    if isinstance(x, Neg):
        return "-" + x.r.text()
    if isinstance(x, float):
        return repr(x)
    if isinstance(x, int):
        return str(x) if -16 <= x <= 64 else hex(x & 0xFFFFFFFF)
    return str(x)


TRANS = ("v_exp_f32", "v_log_f32", "v_rcp_f32", "v_rsq_f32", "v_sqrt_f32")


class Inst:
    def __init__(self, op, ops=(), defs=(), uses=(), kind="salu", suffix="", tag=None, counted=True,
                 sdefs=(), suses=(), cost=1.0):
        self.op, self.ops, self.kind, self.suffix = op, list(ops), kind, suffix
        self.defs = [rf(d) for d in defs]
        self.uses = [rf(u) for u in uses]
        self.tag, self.counted = tag, counted
        self.sdefs, self.suses = set(sdefs), set(suses)
        self.cost = cost

    def text(self):
        if self.kind == "label":
            return self.op + ":"
        if self.kind == "comment":
            return "; " + self.op
        s = self.op
        if self.ops:
            s += " " + ", ".join(optext(o) for o in self.ops)
        if self.suffix:
            s += " " + self.suffix
        return "    " + s


def sregs(x):
    if not isinstance(x, str):
        return set()
    m = re.fullmatch(r"s\[(\d+):(\d+)\]", x)
    if m:
        return {f"s{i}" for i in range(int(m.group(1)), int(m.group(2)) + 1)}
    if re.fullmatch(r"s\d+", x):
        return {x}
    if x == "vcc":
        return {"vcc"}
    return set()


def vsrc(xs):
    out = []
    for x in xs:
        if isinstance(x, Neg):
            out.append(x.r)
        elif isinstance(x, (Ref, VReg)):
            out.append(rf(x))
    return out


def V(op, dst, *srcs, suffix="", rmw=False):
    srcs = [rf(s) for s in srcs]
    dst = rf(dst)
    base = op.replace("_e64", "").replace("_e32", "")
    kind = "trans" if base in TRANS else "valu"
    if "row_" in suffix or "quad_perm" in suffix:
        kind = "dpp"
    if base.startswith("v_dot2"):
        kind = "dot"
    uses = vsrc(srcs) + ([dst] if rmw or base in ("v_fmac_f32",) else [])
    su = set()
    for s in srcs:
        su |= sregs(s)
    vop3 = len(srcs) >= 3 or base in ("v_cvt_pk_bf16_f32",) or kind == "dpp" or any(isinstance(x, int) and not -16 <= x <= 64 for x in srcs)
    return Inst(op, [dst] + srcs, [dst], uses, kind, suffix, suses=su, cost=3.0 if kind == "trans" else 1.6 if vop3 else 1.0)


def VCMP(op, sdst, a, b):
    a, b = rf(a), rf(b)
    return Inst(op, [sdst, a, b], [], vsrc([a, b]), "valu", sdefs=sregs(sdst), suses=sregs(a) | sregs(b))


def RFL(sdst, src):
    src = rf(src)
    return Inst("v_readfirstlane_b32", [sdst, src], [], [src], "readlane", sdefs=sregs(sdst))


def RL(sdst, src, lane):
    src = rf(src)
    return Inst("v_readlane_b32", [sdst, src, lane], [], [src], "readlane", sdefs=sregs(sdst))


def SWAP32(a, b):
    a, b = rf(a), rf(b)
    return Inst("v_permlane32_swap_b32", [a, b], [a, b], [a, b], "permlane")


def MFMA(shape, d, a, b, c):
    d, a, b = rf(d), rf(a), rf(b)
    c = rf(c)
    op = {32: "v_mfma_f32_32x32x16_bf16", 16: "v_mfma_f32_16x16x32_bf16"}[shape]
    i = Inst(op, [d, a, b, c], [d], [a, b] + vsrc([c]), "mfma", cost=3.0)
    i.passes = 8 if shape == 32 else 4
    i.a, i.b, i.c, i.d = a, b, (c if isinstance(c, Ref) else None), d
    return i


def S(text, m0=False, cost=0.5):
    op, _, rest = text.partition(" ")
    i = Inst(op, [rest] if rest else [], kind="salu", cost=cost)
    i.m0def = m0 or rest.startswith("m0,")
    return i


def DSR(op, dst, addr, off, tag=None):
    assert 0 <= off < 65536, off
    dst, addr = rf(dst), rf(addr)
    return Inst(op, [dst, addr], [dst], [addr], "ds_read", f"offset:{off}" if off else "", tag=tag)


def DSW(op, addr, src, off, tag=None):
    assert 0 <= off < 65536, off
    src, addr = rf(src), rf(addr)
    return Inst(op, [addr, src], [], [addr, src], "ds_write", f"offset:{off}" if off else "", tag=tag)


def _bsuf(off, flags):
    assert 0 <= off < 4096, off
    return ("offen" + (f" offset:{off}" if off else "") + (" " + flags if flags else ""))


def DMA(voff, srd, soff, off=0, tag=None, flags=""):
    voff = rf(voff)
    i = Inst("buffer_load_dwordx4", [voff, srd, soff], [], [voff], "dma", _bsuf(off, flags) + " lds", tag=tag,
             suses=sregs(srd) | sregs(soff))
    return i


def BLOAD(op, dst, voff, srd, soff, off=0, flags="", tag=None, counted=True):
    dst, voff = rf(dst), rf(voff)
    return Inst(op, [dst, voff, srd, soff], [dst], [voff], "vload", _bsuf(off, flags), tag=tag, counted=counted,
                suses=sregs(srd) | sregs(soff))


def BSTORE(op, src, voff, srd, soff, off=0, flags="", tag=None, counted=True):
    src, voff = rf(src), rf(voff)
    i = Inst(op, [src, voff, srd, soff], [], [src, voff], "vstore", _bsuf(off, flags), tag=tag, counted=counted,
             suses=sregs(srd) | sregs(soff))
    i.data = src
    return i


def GLOAD(op, dst, voff, sbase, off=0, flags="", tag=None, counted=True):
    dst, voff = rf(dst), rf(voff)
    suf = ((f"offset:{off}" if off else "") + " " + flags).strip()
    return Inst(op, [dst, voff, sbase], [dst], [voff], "vload", suf, tag=tag, counted=counted, suses=sregs(sbase))


def GSTORE(op, voff, src, sbase, off=0, flags="", tag=None, counted=True):
    src, voff = rf(src), rf(voff)
    suf = ((f"offset:{off}" if off else "") + " " + flags).strip()
    i = Inst(op, [voff, src, sbase], [], [src, voff], "vstore", suf, tag=tag, counted=counted, suses=sregs(sbase))
    i.data = src
    return i


def BAR():
    return Inst("s_barrier", kind="barrier")


def WAITVM(*tags):
    i = Inst("waitvm", kind="pw_vm", cost=0.3)
    i.tags = set(tags)
    return i


def WAITLGKM():
    return Inst("waitlgkm", kind="pw_lgkm", cost=0.3)


def WAITALL():
    return Inst("waitall", kind="pw_all")


def LABEL(n):
    return Inst(n, kind="label", cost=0)


def COMMENT(n):
    return Inst(n, kind="comment", cost=0)


def KEEP(*refs):
    return Inst("keep", uses=[rf(r) for r in refs], kind="keep", cost=0)


def allocate(prog, limit=256, reserved=()):
    first, last = {}, {}
    for idx, ins in enumerate(prog):
        for r in ins.defs + ins.uses:
            o = r.reg
            if o not in first:
                first[o] = idx
                last[o] = [-1] * o.n
            for e in range(r.off, r.off + r.cnt):
                last[o][e] = idx
    busy = [-1] * limit
    for p in reserved:
        busy[p] = 1 << 30
    fixed = [o for o in first if o.fixed]
    for o in fixed:
        for e in range(o.n):
            busy[o.phys + e] = max(busy[o.phys + e], last[o][e])
    import random
    objs = sorted((o for o in first if not o.fixed), key=lambda o: first[o])
    busy0 = list(busy)
    err = None
    for attempt in range(400):
        rnd = random.Random(attempt)
        busy = list(busy0)
        peak = 0
        ok = True
        for o in objs:
            st = first[o]
            end = max(last[o])
            cands = [b for b in range(0, limit - o.n + 1, o.align) if all(busy[b + e] < st for e in range(o.n))]
            if not cands:
                live = sum(1 for x in busy if x >= st)
                err = f"out of VGPRs for {o.name} (n={o.n}) at inst {st}; live={live}"
                ok = False
                break
            if o.long or end - st > 600:
                b = cands[-1]
            elif attempt == 0:
                b = cands[0]
            else:
                def score(b):
                    lo = b
                    while lo > 0 and busy[lo - 1] < st:
                        lo -= 1
                    hi = b + o.n
                    while hi < limit and busy[hi] < st:
                        hi += 1
                    edge = min(b - lo, hi - b - o.n)
                    return (hi - lo) + 4 * edge + rnd.random() * (attempt % 8) * 3
                b = min(cands, key=score)
            o.phys = b
            for e in range(o.n):
                busy[b + e] = max(last[o][e], st)
            peak = max(peak, sum(1 for x in busy if x >= st))
        if ok:
            return peak
    raise RuntimeError(err)


def insert_waits(prog):
    out = []
    vm, lg = [], []

    def need(q, pred):
        p = -1
        for k, e in enumerate(q):
            if pred(e):
                p = k
        return p

    for ins in prog:
        touched = set()
        for r in ins.defs + ins.uses:
            touched.update(r.regs())
        if ins.kind == "keep":
            continue
        pv = need(vm, lambda e: e[1] & touched)
        pl = need(lg, lambda e: e[1] & touched)
        if ins.kind == "pw_vm":
            pv = need(vm, lambda e: e[0] in ins.tags)
        elif ins.kind == "pw_lgkm":
            pl = len(lg) - 1
        elif ins.kind == "pw_all":
            pv, pl = len(vm) - 1, len(lg) - 1
        parts = []
        if pv >= 0 or ins.kind == "pw_all":
            n = sum(e[2] for e in vm[pv + 1:])
            assert n <= 63
            parts.append(f"vmcnt({n})")
            if getattr(ins, "cond", False):
                assert vm[pv][2] == 0 and pl < 0
                del vm[pv]
            else:
                del vm[:pv + 1]
        if pl >= 0 or ins.kind == "pw_all":
            n = min(len(lg) - 1 - pl, 15)
            parts.append(f"lgkmcnt({n})")
            del lg[:len(lg) - n]
        if parts:
            out.append(Inst("s_waitcnt", [" ".join(parts)], kind="wait"))
        if ins.kind.startswith("pw_"):
            continue
        out.append(ins)
        dregs = set()
        for r in ins.defs:
            dregs.update(r.regs())
        if ins.kind in ("dma", "vload", "vstore"):
            if ins.counted or dregs:
                vm.append((ins.tag, dregs, 1 if ins.counted else 0))
                assert len(vm) <= 60, "too many outstanding vm ops"
        elif ins.kind in ("ds_read", "ds_write"):
            lg.append((ins.tag, dregs))
        elif ins.kind == "smem":
            lg += [(None, set()), (None, set())]
    return out


VALU_KINDS = ("valu", "trans", "dpp", "permlane", "dot", "readlane")


def _regs(refs):
    s = set()
    for r in refs:
        s.update(r.regs())
    return s


def required_gap(p, c):
    need = 0
    pd, pu = p._d, p._u
    cd, cu = c._d, c._u
    if p.kind in VALU_KINDS:
        if pd & cu:
            if c.kind == "mfma":
                need = max(need, 2)
            if c.kind in ("permlane", "dpp"):
                need = max(need, 2)
            if c.kind == "readlane":
                need = max(need, 1)
            if p.kind == "trans" and c.kind in VALU_KINDS and c.kind != "trans":
                need = max(need, 1)
        if p.kind == "dot" and (pd & (cu | cd)) and not (c.kind == "dot"):
            need = max(need, 3)
        if p.sdefs & c.suses:
            if c.kind in VALU_KINDS:
                need = max(need, 2)
            if c.kind in ("dma", "vload", "vstore"):
                need = max(need, 5)
        if p.sdefs and c.kind == "salu":
            txt = " ".join(str(o) for o in c.ops)
            for s in p.sdefs:
                if re.search(r"\b" + s + r"\b", txt):
                    need = max(need, 1)
    if p.kind == "mfma":
        big = 12 if p.passes == 8 else 8
        ovl = 10 if p.passes == 8 else 6
        war = 7 if p.passes == 8 else 3
        if c.kind == "mfma":
            ab = set(c.a.regs()) | set(c.b.regs())
            if pd & ab:
                need = max(need, big)
            if c.c is not None and pd & set(c.c.regs()):
                same = list(c.c.regs()) == list(p.d.regs()) and c.passes == p.passes
                if not same:
                    need = max(need, ovl)
            elif pd & cd and not (c.c is not None and list(c.c.regs()) == list(p.d.regs())):
                need = max(need, big)
        elif c.kind in VALU_KINDS:
            if pd & (cu | cd):
                need = max(need, big)
            if p.c is not None and set(p.c.regs()) & cd:
                need = max(need, war)
        elif c.kind in ("ds_read", "ds_write", "dma", "vload", "vstore"):
            if pd & (cu | cd):
                need = max(need, big)
            if p.c is not None and set(p.c.regs()) & cd:
                need = max(need, war)
    if p.kind == "vstore" and p.data.cnt >= 2:
        if set(p.data.regs()) & cd:
            need = max(need, 2)
    if p.kind == "salu" and getattr(p, "m0def", False) and c.kind == "dma":
        need = max(need, 1)
    return need


def insert_nops(prog):
    out = []
    for ins in prog:
        ins._d, ins._u = _regs(ins.defs), _regs(ins.uses)
        if ins.kind in ("label", "comment"):
            out.append(ins)
            continue
        dist, pad = 0, 0
        for p in reversed(out):
            if p.kind in ("label", "comment"):
                continue
            g = required_gap(p, ins)
            if g > dist:
                pad = max(pad, g - dist)
            dist += p.states if p.kind == "nop" else 1
            if dist >= 13:
                break
        if pad:
            n = Inst("s_nop", [pad - 1], kind="nop")
            n.states = pad
            n._d, n._u = set(), set()
            out.append(n)
        out.append(ins)
    return out


def finish(prog, limit=256, reserved=()):
    peak = allocate(prog, limit, reserved)
    prog = insert_waits(prog)
    prog = insert_nops(prog)
    return prog, peak
```

```python
import os, sys
sys.path.insert(0, os.path.dirname(os.path.abspath(__file__)))
from asmfw import *

NAME = "gated_mix__linear_kernel_hedgehog__glu_gated_glu__prompt"
OPT = dict(stamp=0, D=2, nslot=10, spin=1 << 22)
for a in sys.argv[2:]:
    k, v = a.split("=")
    OPT[k] = int(v)
D = OPT["D"]
SLOT = 16384

WS_H = 0
WS_Z = 0x900000
ZBLK = 10240
THEAD = 2304
WS_G = 0x920000
WS_STAMP = 0x930000
WS_SIZE = 0xC00000 if OPT.get("trace", 0) else 0xA00000

sX, sQKV, sPHI, sWO, sWG, sWU, sWD = "s[4:5]", "s[6:7]", "s[8:9]", "s[10:11]", "s[14:15]", "s[16:17]", "s[18:19]"
sGW, sOUTP, sDBG, sWS = "s[20:21]", "s[22:23]", "s[24:25]", "s[26:27]"
SX, SQ, SG, SU, SD, SO, SW, SOUT = ("s[28:31]", "s[32:35]", "s[36:39]", "s[40:43]", "s[44:47]", "s[48:51]",
                                    "s[52:55]", "s[56:59]")
s_w, s_r, s_c, s_j, s_rb, s_rb2, s_cb, s_cg = "s60", "s61", "s62", "s63", "s64", "s65", "s66", "s67"
s_w2048, s_u, s_h, s_R1, s_R3, s_R3h, s_L, s_nL = "s68", "s69", "s70", "s71", "s72", "s73", "s74", "s75"
s_so0, s_so1, s_side = "s76", "s77", "s78"
s_hst2, s_hst1, s_hld, s_tat, s_tld, s_f2sig, s_f2wait, s_f1 = "s79", "s80", "s81", "s82", "s83", "s84", "s85", "s86"
s_t0, s_t1, s_t2 = "s87", "s88", "s89"
s_mask = "s[90:91]"
s_spin, s_ph = "s92", "s93"
s_RA, s_tw = "s98", "s99"
SPHI = "s[8:11]"
SGH, SUH = SX, SQ
s_ts = "s[94:95]"
s_rot, s_roth, s_rot2 = "s100", "s101", "s3"


def srd_lo(s):
    return int(s[2:s.index(":")])


class Prog:
    def __init__(self, typ):
        self.typ = typ
        self.pro = []
        self.main = []
        self.first = {}
        self.side = {}
        self.prebar = {}
        self.tail = []
        self.slow = []
        self.v0 = VReg("v0", fixed=0)
        self.nstamp = 0
        self.vst = VReg("stamps", long=True) if OPT["stamp"] else None
        self.nlab = 0

    def label(self, n):
        self.nlab += 1
        return f"L{self.typ}_{n}_{self.nlab}"

    def stamp(self):
        if not OPT["stamp"]:
            return []
        return [WAITLGKM()] + self.stamp_issue() + self.stamp_collect()

    def stamp_issue(self):
        if not OPT["stamp"]:
            return []
        self.stamp_pending = True
        return [S(("s_memrealtime " if OPT["stamp"] == 1 else "s_memtime ") + s_ts)]

    def stamp_collect(self):
        if not OPT["stamp"] or not getattr(self, "stamp_pending", False):
            return []
        self.stamp_pending = False
        k = self.nstamp
        self.nstamp += 1
        i = Inst("v_writelane_b32", [self.vst.ref(), "s94", k], [self.vst], [self.vst], "valu")
        return [S("s_waitcnt lgkmcnt(0)"), i]

    def probe(self, name):
        if not OPT["stamp"] or not OPT.get("probe", 0):
            return []
        self.probes = getattr(self, "probes", [])
        k = 44 + len(self.probes)
        assert k < 64
        self.probes.append(name)
        i = Inst("v_writelane_b32", [self.vst.ref(), "s96", k], [self.vst], [self.vst], "valu")
        return [S(("s_memrealtime " if OPT["stamp"] == 1 else "s_memtime ") + "s[96:97]"), WAITLGKM(), S("s_waitcnt lgkmcnt(0)"), i]

    def place(self, groups, m0, m1):
        groups = [g if isinstance(g, list) else [g] for g in groups]
        tot = sum(sum(i.cost for i in g) for g in groups) or 1.0
        n = m1 - m0 + 1
        acc = 0.0
        for g in groups:
            m = m0 + min(n - 1, int(acc / tot * n))
            self.side.setdefault(m, []).append(g)
            acc += sum(i.cost for i in g)

    def lds(self, base, addr):
        fix = []
        if not (0 <= addr - base.bias < 65536):
            nb = addr & ~0xFFFF
            fix.append(V("v_add_u32", base, nb - base.bias, base))
            base.bias = nb
        return fix, addr - base.bias

    def trfrag(self, base, addr, step2):
        f = VReg("frag", 4)
        fix, imm = self.lds(base, addr)
        assert imm + step2 < 65536
        return f, fix + [DSR("ds_read_b64_tr_b16", f[0:2], base, imm), DSR("ds_read_b64_tr_b16", f[2:4], base, imm + step2)]

    def field(self, dst, fields, init=None):
        out = []
        t = VReg("ft")
        cur = init
        for lo, width, pos in fields:
            out.append(V("v_bfe_u32", t, self.lane, lo, width))
            if cur is None:
                out.append(V("v_lshlrev_b32", dst, pos, t))
            else:
                out.append(V("v_lshl_add_u32", dst, t, pos, cur))
            cur = dst
        return out

    def srd(self, s, ptr, shift, total, minus=0):
        a, p = srd_lo(s), srd_lo(ptr)
        o = []
        if shift is None:
            o += [S(f"s_mov_b32 s{a}, s{p}"), S(f"s_mov_b32 s{a+1}, s{p+1}"), S(f"s_mov_b32 s{a+2}, {total}")]
        else:
            o += [S(f"s_add_u32 s{a}, s{p}, {shift}"), S(f"s_addc_u32 s{a+1}, s{p+1}, 0"),
                  S(f"s_sub_u32 s{a+2}, {total + minus}, {shift}")]
            if minus:
                o += [S(f"s_sub_u32 s{a}, s{a}, {minus}"), S(f"s_subb_u32 s{a+1}, s{a+1}, 0")]
        o.append(S(f"s_mov_b32 s{a+3}, 0x20000"))
        return o

    def poll(self, name, load, test, regs):
        s0, s1, slow, back = self.label("np"), self.label("nc"), self.label("slow"), self.label("back")
        ld = load()
        ld.counted = False
        issue = [S(f"s_cmp_lg_u32 {s_w}, 0"), S(f"s_cbranch_scc1 {s0}"), ld, LABEL(s0)]
        t = test()
        t[0].cond = True
        chk = self.probe(name + "<") + [S(f"s_cmp_lg_u32 {s_w}, 0"), S(f"s_cbranch_scc1 {back}")] + t + [
            S(f"s_cbranch_scc0 {slow}"), LABEL(back), KEEP(*regs)] + self.probe(name + ">")
        self.slow.append((slow, back, lambda: [load().text().strip(), "s_waitcnt vmcnt(0)", test()[0].text().strip(), "s_nop 1"]
                          + [x.text().strip() for x in test()[1:]]))
        return issue, chk

    def poll_cnt(self, soff, shift, want):
        vp = VReg("poll")
        return self.poll(f"chk{soff}_{shift}", lambda: BLOAD("buffer_load_dword", vp, self.vzero, SW, soff, 0, "sc1"),
                         lambda: [RFL(s_t0, vp), S(f"s_bfe_u32 {s_t0}, {s_t0}, {hex((8 << 16) | shift)}"),
                                  S(f"s_cmp_eq_u32 {s_t0}, {want}")], [vp, self.vzero])

    def poll_f0(self):
        vp, va = VReg("poll"), VReg("polla")
        issue, chk = self.poll("f0", lambda: GLOAD("global_load_dword", vp, va, sDBG, 0, "sc1"),
                               lambda: [VCMP("v_cmp_ne_u32", "vcc", 0, vp), S("s_cmp_eq_u64 vcc, -1")], [vp, va])
        return self.field(va, [(0, 3, 2)]) + issue, chk

    def signal(self, soff, val):
        skip = self.label("nosig")
        t = VReg("sigv")
        a = BSTORE("buffer_atomic_add", t, self.vzero, SW, soff, counted=False)
        return [V("v_mov_b32", t, val), S(f"s_cmp_lg_u32 {s_w}, 0"), S(f"s_cbranch_scc1 {skip}"),
                S("s_mov_b64 exec, 1"), a, S("s_mov_b64 exec, -1"), LABEL(skip)]

    def rot(self, dst, reg, i, mask, mul, add=0, base=None):
        if not OPT.get("rot", 1):
            v = (i & mask) * mul + add
            return [S(f"s_add_u32 {dst}, {base}, {v}") if base else S(f"s_mov_b32 {dst}, {v}")]
        o = [S(f"s_add_u32 {dst}, {reg}, {i}"), S(f"s_and_b32 {dst}, {dst}, {mask}"), S(f"s_mul_i32 {dst}, {dst}, {mul}")]
        if add:
            o.append(S(f"s_add_u32 {dst}, {dst}, {add & 0xFFFFFFFF}"))
        if base:
            o.append(S(f"s_add_u32 {dst}, {dst}, {base}"))
        return o

    def dma_item(self, it, slot):
        kind, i = it
        tag = it
        o = [S(f"s_add_u32 m0, {s_w2048}, {slot * SLOT}")]
        if kind == "x":
            return [o + self.rot(s_so0, s_rot, i, 7, 128) + [DMA(self.vx0, SX, s_so0, 0, tag)],
                    [DMA(self.vx1, SX, s_so0, 1024, tag)]]
        if kind == "kv":
            return [o + self.rot(s_so0, s_rot, i, 7, 64 * 3072, 1024) + [DMA(self.vkv, SQ, s_so0, 0, tag)],
                    [DMA(self.vkv, SQ, s_so0, 1024, tag)]]
        if kind == "q":
            return [o + self.rot(s_so0, s_rot, 2 * i, 7, 64 * 3072) + [DMA(self.vkv, SQ, s_so0, 0, tag)],
                    [S(f"s_add_u32 m0, {s_w2048}, {slot * SLOT + 1024}")] + self.rot(s_so0, s_rot, 2 * i + 1, 7, 64 * 3072)
                    + [DMA(self.vkv, SQ, s_so0, 0, tag)]]
        if kind in ("g0", "g1"):
            return [o + self.rot(s_so0, s_rot, i, 7, 64 * 3584, 128 * int(kind[1])) + [DMA(self.vg, SG, s_so0, 0, tag)],
                    [DMA(self.vu, SU, s_so0, 1024, tag)]]
        if kind == "gh":
            return [o + self.rot(s_so0, s_roth, 2 * i, 7, 64 * 3584) + [DMA(self.vgh, SGH, s_so0, 0, tag)],
                    [DMA(self.vuh, SUH, s_so0, 1024, tag)]]
        if kind == "phi":
            a = srd_lo(SPHI)
            return [[S(f"s_lshl_b32 {s_so0}, {s_j}, 1"), S(f"s_add_u32 {s_so0}, {s_so0}, {s_c}"), S(f"s_lshl_b32 {s_so0}, {s_so0}, 10"),
                     S(f"s_mov_b32 s{a+2}, 16384"),
                     S(f"s_mov_b32 s{a+3}, 0x20000")] + o + [DMA(self.vl16, SPHI, s_so0, 0, tag)]]
        if kind == "T":
            vt, t1 = VReg("vT"), VReg("vT1")
            g0 = [V("v_lshrrev_b32", t1, 4, self.lane), S(f"s_lshl_b32 {s_so0}, {s_w}, 2"), V("v_add_u32", t1, s_so0, t1),
                  V("v_xor_b32", t1, t1, self.lane), V("v_and_b32", t1, 7, t1), V("v_and_b32", vt, 0x3f80, self.vl16),
                  V("v_lshl_add_u32", vt, t1, 4, vt),
                  S(f"s_lshl_b32 {s_so0}, {s_w}, 10"), S(f"s_add_u32 m0, {s_so0}, {slot * SLOT}"),
                  S(f"s_add_u32 {s_so0}, {s_so0}, {s_tld}"), DMA(vt, SW, s_so0, 0, tag, "sc1")]
            g1 = [S(f"s_lshr_b32 {s_so0}, {s_w}, 1"), V("v_xor_b32", t1, s_so0, self.lane), V("v_and_b32", t1, 7, t1),
                  V("v_lshlrev_b32", vt, 4, t1), S(f"s_lshl_b32 {s_so0}, {s_w}, 7"),
                  S(f"s_add_u32 m0, {s_so0}, {slot * SLOT + 8192}"), S(f"s_add_u32 {s_so0}, {s_so0}, {s_tld}"),
                  S(f"s_add_u32 {s_so0}, {s_so0}, 8192"), S("s_mov_b64 exec, 0xff"), DMA(vt, SW, s_so0, 0, tag, "sc1"),
                  S("s_mov_b64 exec, -1")]
            return [g0, g1]
        if i < 8:
            base, srd, rows, k, mask = s_R1, SD, 64 * (i >> 2), i & 3, 3
        elif i < 12:
            base, srd, rows, k, mask = s_RA, SD, 0, i - 8, 3
        elif i < 14:
            base, srd, rows, k, mask = s_R3h, SD, 0, i - 12, 1
        else:
            base, srd, rows, k, mask = s_R3, SO, 0, i - 14, 3
        return [o + self.rot(s_so0, s_rot2, k, mask, 16384, rows * 1024, base) + [DMA(self.vw2a, srd, s_so0, 0, tag)],
                [DMA(self.vw2b, srd, s_so0, 1024, tag)]]

    def warmup(self):
        vt = VReg("vt")
        pc = self.label("pc")

        def ld(base):
            i = GLOAD("global_load_dword", self.vdummy, vt, base)
            i.defs = []
            i.uses.append(self.vdummy.ref())
            return i
        o = [S(f"s_getpc_b64 {s_mask}"), LABEL(pc), S(f"s_bfe_u32 {s_t0}, s2, 0x20003"), S(f"s_lshl_b32 {s_t0}, {s_t0}, 3"),
             S(f"s_add_u32 {s_t0}, {s_t0}, {s_w}"), S(f"s_mul_i32 {s_t0}, {s_t0}, 640"),
             V("v_lshl_add_u32", vt, self.lane, 7, s_t0), V("v_min_u32", vt, f"L{self.typ}_end-{pc}-4", vt),
             S("s_mov_b64 exec, 31"), ld(s_mask), V("v_mov_b32", vt, 0)]
        o[-1] = S("s_mov_b64 exec, -1")
        return o

    def malltouch(self):
        A = self.typ == "A"
        vt, vr = VReg("vt"), VReg("vr")

        def ld(srd, off=0):
            i = BLOAD("buffer_load_dword", self.vdummy, vt, srd, s_t1, off)
            i.defs = []
            i.uses.append(self.vdummy.ref())
            return i
        o = [S(f"s_lshr_b32 {s_t0}, {s_rb}, 1"), S(f"s_lshl_b32 {s_t0}, {s_t0}, 4"), S(f"s_and_b32 {s_t1}, {s_rb}, 1"),
             S(f"s_add_u32 {s_t0}, {s_t0}, {s_t1}"), S(f"s_lshl_b32 {s_t0}, {s_t0}, 2"), V("v_and_b32", vr, 3, self.lane)]
        if A:
            o += [S(f"s_movk_i32 {s_t2}, 3584"), V("v_mul_u32_u24", vt, s_t2, vr), V("v_bfe_u32", vr, self.lane, 2, 1),
                  S(f"s_andn2_b32 {s_t2}, 1, {s_j}"), S(f"s_lshl_b32 {s_t2}, {s_t2}, 7"), V("v_mad_u32_u24", vt, vr, s_t2, vt),
                  S(f"s_mul_i32 {s_t1}, {s_t0}, 3584"), S("s_mov_b64 exec, 0xff"), ld(SG), ld(SU, 1024)]
        else:
            o += [S(f"s_movk_i32 {s_t2}, 3072"), V("v_mul_u32_u24", vt, s_t2, vr), S(f"s_mul_i32 {s_t1}, {s_t0}, 3072"),
                  S("s_mov_b64 exec, 15"), ld(SQ), S(f"s_movk_i32 {s_t2}, 3584"), V("v_mul_u32_u24", vt, s_t2, vr),
                  S(f"s_mul_i32 {s_t1}, {s_t0}, 3584"), ld(SG, 128), ld(SU, 1024 + 128)]
        o += [S("s_mov_b64 exec, 0x1ff"), S(f"s_mul_i32 {s_t0}, s2, 9"), V("v_add_u32", vr, s_t0, self.lane),
              V("v_lshlrev_b32", vt, 10, vr), S(f"s_lshl_b32 {s_t1}, {s_w}, 7"), ld(SD),
              V("v_subrev_u32", vt, 1792 * 1024, vt), ld(SO), S("s_mov_b64 exec, -1")]
        return o

    def w2touch(self, k, n):
        rows = 72 // n
        o = []
        if k == 0:
            self.vtw = VReg("vtw")
            a, d, q = srd_lo(SPHI), srd_lo(SD), srd_lo(SO)
            o += [S(f"s_lshr_b32 {s_side}, s2, 3"), S(f"s_mul_i32 {s_tw}, {s_side}, {72 * 1024}"),
                  S(f"s_lshl_b32 {s_t2}, {s_w}, 7"), S(f"s_add_u32 {s_tw}, {s_tw}, {s_t2}"),
                  S(f"s_sub_u32 {s_t2}, {s_tw}, {1792 * 1024}"), S(f"s_cmp_lt_u32 {s_side}, 25"),
                  S(f"s_cselect_b32 {s_tw}, {s_tw}, {s_t2}"), S(f"s_cselect_b64 s[{a}:{a+1}], s[{d}:{d+1}], s[{q}:{q+1}]"),
                  S(f"s_cselect_b32 s{a+2}, s{d+2}, s{q+2}"), V("v_lshlrev_b32", self.vtw, 10, self.lane)]
        i = BLOAD("buffer_load_dword", self.vdummy, self.vtw, SPHI, s_side)
        i.defs = []
        i.uses.append(self.vdummy.ref())
        o += [S(f"s_add_u32 {s_side}, s2, {k}"), S(f"s_and_b32 {s_side}, {s_side}, {n - 1}"),
              S(f"s_mul_i32 {s_side}, {s_side}, {rows * 1024}"), S(f"s_add_u32 {s_side}, {s_side}, {s_tw}"),
              S(f"s_mov_b64 exec, {hex((1 << rows) - 1)}"), i, S("s_mov_b64 exec, -1")]
        return o

    def gu_epi(self, acc, sbase, ch, tag):
        g = []
        for k in range(8):
            g.append(V("v_mul_f32", acc[k], s_nL, acc[k]))
        for k in range(8):
            g.append(V("v_exp_f32", acc[k], acc[k]))
        for k in range(8):
            g.append(V("v_add_f32", acc[k], 1.0, acc[k]))
        for k in range(8):
            g.append(V("v_rcp_f32", acc[k], acc[k]))
        for k in range(8):
            g.append(V("v_mul_f32", acc[8 + k], acc[k], acc[8 + k]))
        for k in range(4):
            g.append(V("v_cvt_pk_bf16_f32", acc[k], acc[8 + 2 * k], acc[9 + 2 * k]))
        g.append([S(f"s_add_u32 {s_side}, {sbase}, {ch * 8192}"),
                  BSTORE("buffer_store_dwordx4", acc[0:4], self.vl16, SW, s_side, 0, "sc1", tag)])
        return g

    def gu_pair(self, accs, sbase, ch, tag):
        a, b = self.gu_epi(accs[0], sbase, ch, tag), self.gu_epi(accs[1], sbase, ch + 1, tag)
        if OPT.get("stj", 0):
            return a[:-1] + b[:-1] + [a[-1], b[-1]]
        return a + b

    def phi_epi(self, acc, norm):
        g = []
        kb, P = VReg("kb", 8), VReg("P", 16)
        for k in range(8):
            g.append(V("v_cvt_pk_bf16_f32", kb[k], acc[2 * k], acc[2 * k + 1]))
        g.append(MFMA(32, P, self.A0, kb[0:4], 0))
        g.append(MFMA(32, P, self.A1, kb[4:8], P))
        mx, mn = VReg("mx"), VReg("mn")
        g.append(V("v_max3_f32", mx, P[0], P[1], P[2]))
        g.append(V("v_min3_f32", mn, P[0], P[1], P[2]))
        for k in range(3, 15, 2):
            g.append(V("v_max3_f32", mx, mx, P[k], P[k + 1]))
            g.append(V("v_min3_f32", mn, mn, P[k], P[k + 1]))
        g.append(V("v_max_f32", mx, mx, P[15]))
        g.append(V("v_min_f32", mn, mn, P[15]))
        sp, sn = VReg("sp"), VReg("sn")
        for k in range(18):
            if k < 16:
                g.append(V("v_sub_f32", acc[k], P[k], mx))
                g.append(V("v_sub_f32", P[k], mn, P[k]))
            if 1 <= k < 17:
                g.append(V("v_exp_f32", acc[k - 1], acc[k - 1]))
                g.append(V("v_exp_f32", P[k - 1], P[k - 1]))
            if norm and k == 3:
                g.append(V("v_add_f32", sp, acc[0], acc[1]))
                g.append(V("v_add_f32", sn, P[0], P[1]))
            elif norm and k > 3:
                g.append(V("v_add_f32", sp, sp, acc[k - 2]))
                g.append(V("v_add_f32", sn, sn, P[k - 2]))
        if norm:
            g.append(V("v_rcp_f32", sp, sp))
            g.append(V("v_rcp_f32", sn, sn))
        for src, sc, o in ((acc, sp, 0), (P, sn, 8)):
            for k in range(8):
                if norm:
                    g.append(V("v_mul_f32", src[2 * k], sc, src[2 * k]))
                    g.append(V("v_mul_f32", src[2 * k + 1], sc, src[2 * k + 1]))
                g.append(V("v_cvt_pk_bf16_f32", acc[o + k], src[2 * k], src[2 * k + 1]))
        return g

    def build(self):
        A = self.typ == "A"
        O = OPT.get
        P = self.pro
        self.postbar = {}
        self.preprobe = {}
        self.prechk = {}
        self.lane = lane = VReg("lane", long=True)
        t = VReg("t")
        P += [V("v_lshrrev_b32", t, 6, self.v0), V("v_and_b32", lane, 63, self.v0), RFL(s_w, t)]
        if OPT["stamp"]:
            P += [V("v_mov_b32", self.vst, 0)]
        if O("trace", 0):
            self.vtr = [VReg("tr", long=True) for _ in range(4)]
            P += [V("v_mov_b32", x, 0) for x in self.vtr]
        self.vx0, self.vx1 = VReg("vx0"), VReg("vx1")
        q, p, q1 = VReg("q"), VReg("p"), VReg("q1")
        P += [V("v_lshrrev_b32", q, 3, lane), V("v_and_b32", p, 7, lane), V("v_lshrrev_b32", q1, 4, lane),
              V("v_xor_b32", t, p, q1), V("v_lshlrev_b32", t, 4, t), V("v_lshl_add_u32", self.vx0, q, 10, t),
              V("v_xor_b32", self.vx1, 64, self.vx0), V("v_add_u32", self.vx1, 7168, self.vx1),
              V("v_and_b32", q1, 1, q1)]
        self.vg, self.vu = VReg("vg", long=True), VReg("vu", long=True)
        t2 = VReg("t2")
        P += [S(f"s_movk_i32 {s_t0}, 3584"), V("v_lshlrev_b32", t, 1, q1), V("v_xor_b32", t, p, t),
              V("v_lshlrev_b32", t, 4, t), V("v_mad_u32_u24", self.vg, q, s_t0, t), V("v_xor_b32", self.vu, 64, self.vg)]
        self.vw2a, self.vw2b = VReg("vw2a", long=True), VReg("vw2b", long=True)
        self.vkv = VReg("vkv", long=True)
        P += [V("v_lshlrev_b32", t2, 2, q1), V("v_xor_b32", t2, p, t2), V("v_lshlrev_b32", t2, 4, t2),
              V("v_lshl_add_u32", self.vw2a, q, 10, t2), V("v_add_u32", self.vw2b, 7168, self.vw2a),
              S(f"s_movk_i32 {s_t1}, 3072"), V("v_mad_u32_u24", self.vkv, q, s_t1, t2)]
        P += [S(f"s_and_b32 {s_r}, {s_w}, 3"), S(f"s_lshr_b32 {s_c}, {s_w}, 2"), S(f"s_lshl_b32 {s_w2048}, {s_w}, 11")]
        if O("rot1", 1) == 1:
            P += [S(f"s_bfe_u32 {s_rot}, s2, 0x30003"), S(f"s_lshr_b32 {s_t0}, s2, 6"), S(f"s_lshl_b32 {s_t0}, {s_t0}, 1"),
                  S(f"s_add_u32 {s_rot}, {s_rot}, {s_t0}")]
        else:
            P += [S(f"s_bfe_u32 {s_rot}, s2, 0x30003"), S(f"s_lshr_b32 {s_t0}, s2, 6"),
                  S(f"s_add_u32 {s_rot}, {s_rot}, {s_t0}"), S(f"s_lshl_b32 {s_rot}, {s_rot}, 1")]
        P += [S(f"s_add_u32 {s_roth}, {s_rot}, {s_c}"), S(f"s_add_u32 {s_rot2}, {s_cb}, {s_rb2}")]
        P += [S(f"s_lshl_b32 {s_t0}, {s_rb}, 17"), S(f"s_lshl_b32 {s_t1}, {s_w}, 14"), S(f"s_add_u32 {s_so0}, {s_t0}, {s_t1}"),
              S(f"s_mul_i32 {s_t0}, {s_w}, {8 * 3072}"), S(f"s_lshl_b32 {s_t1}, {s_j}, 7"), S(f"s_add_u32 {s_so1}, {s_t0}, {s_t1}"),
              S(f"s_mul_i32 {s_t2}, {s_w}, {8 * 3584}")]
        if A:
            P += [S(f"s_lshr_b32 {s_t1}, {s_j}, 1"), S(f"s_mul_i32 {s_h}, {s_t1}, 384"), S(f"s_and_b32 {s_t1}, {s_j}, 1"),
                  S(f"s_lshl_b32 {s_u}, {s_t1}, 8"), S(f"s_add_u32 {s_u}, {s_u}, {s_h}"), S(f"s_add_u32 {s_u}, {s_u}, {s_t2}"),
                  S(f"s_lshl_b32 {s_t1}, {s_t1}, 6"), S(f"s_add_u32 {s_h}, {s_h}, {s_t1}"),
                  S(f"s_mul_i32 {s_t1}, {s_r}, {16 * 3584}"), S(f"s_add_u32 {s_h}, {s_h}, {s_t1}"), S(f"s_add_u32 {s_h}, {s_h}, 128")]
        else:
            P += [S(f"s_lshl_b32 {s_u}, {s_j}, 8"), S(f"s_add_u32 {s_u}, {s_u}, {s_t2}"), S(f"s_add_u32 {s_u}, {s_u}, 1536")]
        P += [S("s_waitcnt lgkmcnt(0)")]
        if OPT["stamp"]:
            P.append(Inst("v_writelane_b32", [self.vst.ref(), "s96", 0], [self.vst], [self.vst], "valu"))
            self.nstamp = 1
            P += self.stamp()
        qsetup = self.srd(SQ, sQKV, s_so1, 1572864)
        gsetup = self.srd(SG, sWG, s_u, 1835008) + self.srd(SU, sWU, s_u, 1835008, minus=1024)
        P += self.srd(SX, sX, s_so0, 2097152) + (qsetup if A else gsetup)

        if A:
            k1 = "kv"
            rest = [[("g0", i)] for i in range(8)] + [[("gh", i)] for i in range(4)]
        else:
            k1 = "g0"
            rest = [[("q", i)] for i in range(4)] + [[("g1", i)] for i in range(8)]
        steps = [[("x", i), (k1, i)] for i in range(8)] + rest
        chorder = [0, 1, 2, 3, 8, 9, 10, 11, 14, 15, 16, 17, 4, 5, 6, 7, 12, 13]
        if O("olast", 1):
            chorder = [0, 1, 2, 3, 8, 9, 10, 11, 4, 5, 6, 7, 12, 13, 14, 15, 16, 17]
        steps += [[("w2", i)] for i in chorder]
        tw = O("tw", 3)
        steps[tw].insert(0, ("phi", 0))
        items = [it for s in steps for it in s]
        k2, k3 = rest[0][0][0], rest[-1][0][0]
        tTd = O("tTd", 1)
        tT = O("tT", 21)
        if not A:
            steps[tT + tTd + 1].insert(0, ("T", 0))
        e1 = O("kve1", 12)
        release_at = e1 + O("kvl", 2)
        reserve_at = {7: 3} if A else {}
        self.lgbar = {e1, release_at, tw, tw + 1} if A else {tw, tw + 1, tT + 2, tT + 3}
        LA = O("la", 5)
        nst = len(steps)
        bars = {0, 1} | set(range(1, 8, 1 + O("b1", 0))) | set(range(7, 20, 1 + O("b2", 1))) | set(range(19, 30, 1 + O("b3", 0)))
        bars |= {20 + O("c4", 11), 20 + O("c2", 2), 20 + O("c3", 6), O("c1", 16), O("cf0", 11), 29}
        bars |= {e1, release_at, e1 + O("f1d", 4), O("s2", 18), 20 + O("s3a", 3)} if A else {
            tT, tT + tTd, tT + O("s4", 6), 20 + O("s3b", 3), O("s1", 12)}
        self.bars = bars
        need = {it: max([-1] + [b for b in bars if b <= tt - 1]) for tt, its in enumerate(steps) for it in its}
        due = {}
        st1 = [it for s in steps[:8] for it in s if it[0] != "phi"]
        st1.insert(4, ("phi", 0))
        for k, it in enumerate(st1):
            due[it] = -1 if k < 5 else (k - 5) // 3 if O("b1", 0) == 0 else (0, 0, 0, 0, 1, 1, 1, 2, 3, 3, 3, 3)[k - 5]
        for it in items:
            if it not in due and it[0] != "w2":
                due[it] = max(need[it] - LA, O("t2", 5))
        due[(k2, 0)] = O("h2", 4)
        due[(k3, 0)] = O("h3a", 9) if A else O("h3b", 8)
        if not A:
            due[("T", 0)] = tT
        w2q = [it for it in items if it[0] == "w2"]
        w2t = O("w2t", 13)
        free = list(range(OPT["nslot"]))
        slot_of = {}
        issue_at = {}
        xslots = []
        lag = O("nolg", 0)
        nfree = 0
        for tstep in range(-1, len(steps)):
            if tstep in bars:
                while nfree <= tstep - lag:
                    free += [slot_of[it] for it in steps[nfree]]
                    nfree += 1
            for _ in range(reserve_at.get(tstep, 0)):
                xslots.append(free.pop())
            if A and tstep == release_at:
                free += xslots
            lst = [it for it in due if due[it] == tstep]
            lst.sort(key=lambda it: need[it])
            while len(lst) > min(len(free), O("maxi", 3) if tstep >= 0 else 9):
                due[lst.pop()] = tstep + 1
            def fits(nf):
                k = nfree
                for x in range(tstep + 1, nst):
                    if x in bars:
                        while k <= x - lag:
                            nf += len(steps[k])
                            k += 1
                    nf -= reserve_at.get(x, 0) - (3 if A and x == release_at else 0) + sum(1 for it in due if due[it] == x)
                    if nf < 0 and O("la", 5) <= 3:
                        return False
                    if x >= 20:
                        break
                return True
            for _ in range(1 if tstep < O("w2two", 9) else 2):
                late = any(due[it] == tstep + 1 and tstep + 1 not in bars for it in due) and len(free) - len(lst) < 2
                if tstep >= w2t and w2q and len(free) > len(lst) and fits(len(free) - len(lst) - 1) and not late:
                    lst.append(w2q.pop(0))
            for it in lst:
                slot_of[it] = free.pop(0)
            issue_at[tstep] = lst
        assert not w2q
        self.steps, self.slot_of, self.issue_at = steps, slot_of, issue_at
        when = {it: tt for tt, l in issue_at.items() for it in l}
        for tt, its in enumerate(steps):
            assert all(when[it] < need[it] or when[it] < 0 for it in its), (tt, its)
        print(self.typ, "bars", sorted(bars), file=sys.stderr)
        print(self.typ, "lookahead", " ".join(str(min(need[it] - when[it] for it in its)) for tt, its in enumerate(steps)), file=sys.stderr)

        def emit(it):
            return [i for g in self.dma_item(it, slot_of[it]) for i in g]
        pre = issue_at[-1]
        P += emit(pre[0]) + emit(pre[1])
        P += gsetup if A else qsetup
        if O("pbar", 1):
            P.append(BAR())
        P += self.srd(SW, sWS, None, WS_SIZE)
        self.vl16 = VReg("vl16", long=True)
        self.vzero = VReg("vzero", long=True)
        P += [V("v_lshlrev_b32", self.vl16, 4, lane), V("v_mov_b32", self.vzero, 0)]
        if not A:
            z4, zo = VReg("z4", 4), VReg("zo")
            skip = self.label("nozero")
            P += [S(f"s_cmp_lg_u32 {s_rb}, 0"), S(f"s_cbranch_scc1 {skip}"),
                  S(f"s_mul_i32 {s_t0}, {s_j}, {ZBLK}"), S(f"s_add_u32 {s_t0}, {s_t0}, {WS_Z}")]
            for rep in range(2):
                if rep == 0:
                    P += [S(f"s_lshl_b32 {s_t1}, {s_w}, 10")]
                else:
                    P += [S(f"s_and_b32 {s_t1}, {s_w}, 1"), S(f"s_lshl_b32 {s_t1}, {s_t1}, 10"), S(f"s_add_u32 {s_t1}, {s_t1}, 8192")]
                P += [V("v_add_u32", zo, s_t1, self.vl16), V("v_mov_b32", z4[0], 0)]
                for h in range(4):
                    P += [V("v_subrev_u32", z4[1], h * THEAD + 2176, zo), VCMP("v_cmp_gt_u32", "vcc", 128, z4[1]),
                          V("v_cndmask_b32", z4[0], z4[0], 1.0, "vcc", suffix="")]
                P += [V("v_mov_b32", z4[k], z4[0]) for k in range(1, 4)]
                P += [BSTORE("buffer_store_dwordx4", z4, zo, SW, s_t0, 0, "sc1", counted=False)]
            P += [LABEL(skip)]
        for it in pre[2:4]:
            P += emit(it)
        self.vdummy = VReg("dummy", long=True)
        P.append(V("v_mov_b32", self.vdummy, 0))
        if O("warm", 1):
            P += self.warmup()
        P += [S(f"s_mov_b32 {s_L}, 0x3fb8aa3b"), S(f"s_mov_b32 {s_nL}, 0xbfb8aa3b")]
        P += [S(f"s_lshl_b32 {s_t0}, {s_cb}, 7")] + self.srd(SD, sWD, s_t0, 1835008) + self.srd(SO, sWO, s_t0, 524288)
        P += [S(f"s_lshl_b32 {s_t1}, {s_rb2}, 16"), S(f"s_add_u32 {s_t0}, {s_t0}, {s_t1}")] + self.srd(SOUT, sOUTP, s_t0, 2097152)
        for it in pre[4:]:
            P += emit(it)
        if O("mt", 0):
            P += self.malltouch()
        P += [S(f"s_lshl_b32 {s_R1}, {s_w}, 17"), S(f"s_add_u32 {s_R1}, {s_R1}, {768 * 1024}"),
              S(f"s_lshr_b32 {s_t0}, {s_w}, 1"), S(f"s_mul_i32 {s_t0}, {s_t0}, {192 * 1024}"), S(f"s_and_b32 {s_t1}, {s_w}, 1"),
              S(f"s_lshl_b32 {s_RA}, {s_t1}, 17"), S(f"s_add_u32 {s_RA}, {s_RA}, {s_t0}"),
              S(f"s_lshl_b32 {s_R3h}, {s_t1}, 15"), S(f"s_add_u32 {s_R3h}, {s_R3h}, {s_t0}"), S(f"s_add_u32 {s_R3h}, {s_R3h}, 65536"),
              S(f"s_lshl_b32 {s_R3}, {s_w}, 16")]
        P += [S(f"s_lshl_b32 {s_t0}, {s_rb}, 2"), S(f"s_add_u32 {s_t0}, {s_t0}, {s_r}"), S(f"s_mul_i32 {s_t0}, {s_t0}, 144"),
              S(f"s_add_u32 {s_t0}, {s_t0}, {s_j}"), S(f"s_lshl_b32 {s_t0}, {s_t0}, 10"),
              S(f"s_lshl_b32 {s_t1}, {s_c}, 13"), S(f"s_add_u32 {s_hst1}, {s_t0}, {s_t1}"),
              S(f"s_add_u32 {s_hst2}, {s_hst1}, {s_t1}"),
              S(f"s_lshl_b32 {s_t0}, {s_rb2}, 1"), S(f"s_add_u32 {s_t0}, {s_t0}, {s_c}"), S(f"s_mul_i32 {s_t0}, {s_t0}, 144"),
              S(f"s_lshl_b32 {s_t1}, {s_r}, 1"), S(f"s_add_u32 {s_t0}, {s_t0}, {s_t1}"), S(f"s_lshl_b32 {s_hld}, {s_t0}, 10")]

        def f2off(dst, rbreg):
            return [S(f"s_lshr_b32 {s_t0}, {rbreg}, 1"), S(f"s_mul_i32 {s_t0}, {s_t0}, {ZBLK}"),
                    S(f"s_and_b32 {s_t1}, {rbreg}, 1"), S(f"s_lshl_b32 {s_t1}, {s_t1}, 8"),
                    S(f"s_add_u32 {s_t0}, {s_t0}, {s_t1}"), S(f"s_add_u32 {dst}, {s_t0}, {WS_Z + 9472}")]
        P += f2off(s_f2sig, s_rb) + [S(f"s_lshr_b32 {s_t2}, {s_rb2}, 1")] + f2off(s_f2wait, s_t2)
        P += [S(f"s_mul_i32 {s_t0}, {s_j}, {ZBLK}"), S(f"s_add_u32 {s_t0}, {s_t0}, {WS_Z}"), S(f"s_add_u32 {s_f1}, {s_t0}, 9216")]
        if A:
            P += [S(f"s_mul_i32 {s_t1}, {s_r}, {THEAD}"), S(f"s_add_u32 {s_tat}, {s_t0}, {s_t1}"),
                  S(f"s_lshl_b32 {s_t1}, {s_c}, 6"), S(f"s_add_u32 {s_tat}, {s_tat}, {s_t1}")]
        else:
            P += [S(f"s_mov_b32 {s_tld}, {s_t0}")]
        bx = [VReg(f"bx{i}") for i in range(4)]
        P += [S(f"s_lshl_b32 {s_t0}, {s_r}, 12")] + self.field(bx[0], [(0, 5, 7)], init=s_t0)
        P += [V("v_bfe_u32", t, lane, 1, 3), V("v_lshrrev_b32", t2, 5, lane), V("v_xor_b32", t, t, t2),
              V("v_lshl_add_u32", bx[0], t, 4, bx[0])]
        P += [V("v_xor_b32", bx[i], 32 * i, bx[0]) for i in range(1, 4)]
        bgu = [VReg("bgu0"), VReg("bgu1")]
        gu_base = self.field(bgu[0], [(5, 1, 11), (4, 1, 10), (2, 2, 7), (0, 2, 3), (3, 2, 5)])
        gu_base += [S(f"s_lshl_b32 {s_t0}, {s_c}, 6"), V("v_xor_b32", bgu[0], s_t0, bgu[0]), V("v_xor_b32", bgu[1], 32, bgu[0])]
        bkv = VReg("bkv")
        kv_base = self.field(bkv, [(5, 1, 11), (2, 2, 7), (3, 1, 6), (4, 1, 5), (0, 2, 3)])
        kv_base += [S(f"s_lshl_b32 {s_t0}, {s_c}, 6"), V("v_xor_b32", bkv, s_t0, bkv)]
        P += kv_base if A else gu_base
        P += self.stamp()

        X = [VReg(f"X{k}", 4, long=True) for k in range(32)]
        M = self.main
        accs = {}
        bgh = VReg("bgh")
        bw2 = [VReg("bw20"), VReg("bw21")]
        Hf = {(ch, e): VReg(f"H{ch}_{e}", 4) for ch in range(18) for e in range(2)}
        accH = [VReg("accH0", 16), VReg("accH1", 16)]
        accO = [VReg("accO0", 16), VReg("accO1", 16)]
        for tstep, its in enumerate(steps):
            self.first[tstep] = len(M)
            kind, i = its[-1]
            sb = slot_of[its[-1]] * SLOT
            if kind in ("kv", "g0", "g1"):
                if i == 0:
                    accs[kind] = [VReg(kind + "a0", 16), VReg(kind + "a1", 16)]
                for ks in range(4):
                    xr = []
                    k = 4 * i + ks
                    if tstep < 8:
                        fix, imm = self.lds(bx[ks], slot_of[("x", i)] * SLOT)
                        xr = fix + [DSR("ds_read_b128", X[k], bx[ks], imm)]
                    for tt in range(2):
                        if kind == "kv":
                            f, rd = self.trfrag(bkv, sb + ks * 4096 + tt * 1024, 512)
                        else:
                            f, rd = self.trfrag(bgu[tt], sb + ks * 4096, 512)
                        a = accs[kind][tt]
                        M.append(((xr if tt == 0 else []) + rd, MFMA(32, a, f, X[k], a if k else 0)))
            elif kind in ("q", "gh"):
                if i == 0:
                    accs[kind] = VReg(kind + "a", 16)
                for ks in range(8):
                    k = 8 * i + ks
                    if kind == "q":
                        f, rd = self.trfrag(bkv, sb + (ks & 3) * 4096 + (ks >> 2) * 1024, 512)
                    else:
                        f, rd = self.trfrag(bgh, sb + ks * 2048, 256)
                    M.append((rd, MFMA(32, accs[kind], f, X[k], accs[kind] if k else 0)))
            else:
                for e in range(2):
                    for nt in range(2):
                        f, rd = self.trfrag(bw2[nt], sb + e * 2048, 1024)
                        a = (accH if i < 14 else accO)[nt]
                        fresh = e == 0 and i in (0, 14)
                        M.append((rd, MFMA(32, a, f, Hf[(i, e)], 0 if fresh else a)))
        self.first[len(steps)] = len(M)
        F = self.first
        P2 = 20

        def bar(tstep):
            return F[tstep + 1] - D

        def post(tstep, g):
            self.postbar.setdefault(tstep, []).extend(g)

        def chk(tstep, g):
            if O("nochk", 0):
                g = [x for x in g if not (x.kind == "salu" and x.op == "s_cbranch_scc0")]
            self.prechk.setdefault(tstep, []).extend(g)

        def sig(tstep, tags, soff, val):
            self.prebar.setdefault(tstep, []).extend(tags)
            self.preprobe[tstep] = self.probe(f"sig{tags[0]}@{tstep}<")
            post(tstep, self.signal(soff, val))

        def split(groups):
            o = []
            for g in groups:
                cur, pending = [], set()
                for x in (g if isinstance(g, list) else [g]):
                    cur.append(x)
                    if x.kind == "salu":
                        if not x.op.startswith("s_cmp"):
                            pending = {x.ops[0].split(",")[0]}
                    else:
                        pending -= x.suses
                        if not pending:
                            o.append(cur)
                            cur = []
                assert not cur
            return o

        if not A:
            tg = O("tg", 4)
            gx, gw, ga, gb, gs = VReg("gx", 8), VReg("gw", 8), VReg("ga"), VReg("gb"), VReg("gs")
            g = [[S(f"s_lshl_b32 {s_t0}, {s_rb}, 3"), S(f"s_add_u32 {s_t0}, {s_t0}, {s_j}"), S(f"s_lshl_b32 {s_t0}, {s_t0}, 3"),
                  S(f"s_add_u32 {s_t0}, {s_t0}, {s_w}"), S(f"s_lshl_b32 {s_ph}, {s_t0}, 3"), S(f"s_add_u32 {s_ph}, {s_ph}, {WS_G}"),
                  S(f"s_lshl_b32 {s_t0}, {s_t0}, 11")] + self.field(gb, [(0, 5, 4)]) + self.field(ga, [(5, 1, 10)], init=gb)
                 + [V("v_add_u32", ga, s_t0, ga)]]
            g += [GLOAD("global_load_dwordx4", gx[4 * k:4 * k + 4], ga, sX, 512 * k) for k in range(2)]
            g += [GLOAD("global_load_dwordx4", gw[4 * k:4 * k + 4], gb, sGW, 512 * k) for k in range(2)]
            self.place(g, F[tg - 2], F[tg - 2] + 4)
            g = [V("v_mov_b32", gs, 0)]
            g += [V("v_dot2_f32_bf16", gs, gx[k], gw[k], gs) for k in range(8)]
            for sfx in ("row_shr:1", "row_shr:2", "row_shr:4", "row_shr:8"):
                g.append(V("v_add_f32", gs, gs, gs, suffix=sfx + " row_mask:0xf bank_mask:0xf bound_ctrl:0"))
            g.append(V("v_add_f32", gs, gs, gs, suffix="row_bcast:15 row_mask:0xa bank_mask:0xf", rmw=True))
            gc = VReg("gc")
            g += [V("v_mul_f32", gs, s_nL, gs), V("v_exp_f32", gs, gs), V("v_add_f32", gs, 1.0, gs), V("v_rcp_f32", gs, gs),
                  self.field(gc, [(5, 1, 2)]),
                  [S("s_mov_b32 exec_lo, 0x80000000"), S("s_mov_b32 exec_hi, 0x80000000"),
                   BSTORE("buffer_store_dword", gs, gc, SW, s_ph, 0, "sc1", "gate"), S("s_mov_b64 exec, -1")]]
            self.place(g, F[tg], F[tg + 1] - 1)
        self.A0, self.A1 = VReg("A0", 4, long=True), VReg("A1", 4, long=True)
        wa, wf, wl = VReg("wa"), VReg("wf", 4), VReg("wl", 4)
        g = [[S(f"s_add_u32 {s_side}, {s_w2048}, {slot_of[('phi', 0)] * SLOT}")]
             + self.field(wa, [(0, 1, 9), (5, 1, 7), (2, 2, 5), (4, 1, 4), (1, 1, 3)], init=s_side),
             DSR("ds_read_b64_tr_b16", wf[0:2], wa, 0), DSR("ds_read_b64_tr_b16", wf[2:4], wa, 256)]
        self.place(split(g), F[tw] - 2, F[tw] + 2)
        g = []
        for k in range(4):
            g += [V("v_lshlrev_b32", wl[k], 16, wf[k]), V("v_and_b32", wf[k], 0xFFFF0000, wf[k]),
                  V("v_mul_f32", wl[k], s_L, wl[k]), V("v_mul_f32", wf[k], s_L, wf[k]),
                  V("v_cvt_pk_bf16_f32", wf[k], wl[k], wf[k])]
        tm = VReg("tm")
        g.append([V("v_and_b32", tm, 4, lane), VCMP("v_cmp_eq_u32", s_mask, 0, tm)])
        g += [V("v_cndmask_b32", self.A0[k], 0, wf[k], s_mask) for k in range(4)]
        g += [V("v_cndmask_b32", self.A1[k], wf[k], 0, s_mask) for k in range(4)]
        self.place(g, F[tw] + 4, F[tw + 2] - 1)

        def hload(ch):
            c0, mask = (ch & ~3, 3) if ch < 12 else (12, 1) if ch < 14 else (14, 3)
            return self.rot(s_side, s_rot2, ch - c0, mask, 8192, c0 * 8192, s_hld) + [
                BLOAD("buffer_load_dwordx4", Hf[(ch, 0)], self.vl16, SW, s_side, 0, "sc1"),
                BLOAD("buffer_load_dwordx4", Hf[(ch, 1)], self.vl16, SW, s_side, 1024, "sc1")]

        w2base = self.field(bw2[0], [(5, 1, 9), (2, 2, 7), (3, 1, 6), (4, 1, 5), (0, 2, 3)])
        w2base = [w2base + [S(f"s_lshl_b32 {s_side}, {s_r}, 12"), V("v_add_u32", bw2[0], s_side, bw2[0]),
                            V("v_xor_b32", bw2[1], 64, bw2[0])]]
        f0i, f0c = self.poll_f0()
        post(O("cf0", 11) - 3, f0i)
        chk(O("cf0", 11), f0c)
        assert O("cf0", 11) <= (e1 if A else O("s1", 12))
        ts2 = O("s2", 18)
        gue = F[16] + O("gue", 10)
        if A:
            self.place(split([gu_base]), F[7], F[7] + 4)
            th0 = min(when[it] for it in when if it[0] == "gh")
            assert all(when[it] < th0 for it in items if it[0] in ("x", "kv"))
            self.vgh, self.vuh = VReg("vgh"), VReg("vuh")
            th = VReg("th")
            self.place([[V("v_lshrrev_b32", th, 2, lane), S(f"s_movk_i32 {s_side}, 3584"),
                         V("v_mul_u32_u24", self.vgh, s_side, th)] + self.field(self.vgh, [(0, 2, 4)], init=self.vgh)
                        + [V("v_xor_b32", self.vuh, 32, self.vgh)]
                        + self.srd(SGH, sWG, s_h, 1835008) + self.srd(SUH, sWU, s_h, 1835008, minus=1024)],
                       bar(th0) - 1, bar(th0) - 1)
            g = self.field(bgh, [(4, 1, 10), (5, 1, 9), (2, 2, 6), (4, 1, 5), (0, 2, 3)])
            self.place(split([g + [S(f"s_lshl_b32 {s_side}, {s_c}, 5"), V("v_xor_b32", bgh, s_side, bgh)]]), F[15], F[15] + 4)
            PH0, PH1, VB = xslots[0] * SLOT, xslots[1] * SLOT, xslots[2] * SLOT
            kacc, vacc = accs["kv"]
            pk = self.phi_epi(kacc, True)
            va = VReg("va")
            vg_ = [[S(f"s_lshl_b32 {s_side}, {s_r}, 12"), S(f"s_add_u32 {s_side}, {s_side}, {VB}")]
                   + self.field(va, [(0, 5, 7), (3, 1, 6), (1, 1, 5), (2, 1, 4), (0, 1, 3)], init=s_side)]
            tv = VReg("tv")
            vg_.append([V("v_lshrrev_b32", tv, 5, lane), V("v_lshlrev_b32", tv, 3, tv), V("v_xor_b32", va, tv, va),
                        S(f"s_lshl_b32 {s_side}, {s_c}, 6"), V("v_xor_b32", va, s_side, va)])
            self.place(split(vg_), F[1], F[1] + 7)
            vg_ = []
            for qq in range(4):
                vg_ += [V("v_cvt_pk_bf16_f32", vacc[4 * qq], vacc[4 * qq], vacc[4 * qq + 1]),
                        V("v_cvt_pk_bf16_f32", vacc[4 * qq + 1], vacc[4 * qq + 2], vacc[4 * qq + 3]),
                        DSW("ds_write_b64", va, vacc[4 * qq:4 * qq + 2], 0)]
                if qq < 3:
                    vg_.append(V("v_xor_b32", va, 16 * (qq ^ (qq + 1)), va))
            pa = VReg("pa")
            pw = [[S(f"s_mov_b32 {s_side}, {(PH1 - 16384) & 0xffffffff}"), S(f"s_cmp_lt_u32 {s_r}, 2"),
                   S(f"s_cselect_b32 {s_side}, {PH0}, {s_side}"),
                   S(f"s_lshl_b32 {s_t2}, {s_r}, 13"), S(f"s_add_u32 {s_side}, {s_side}, {s_t2}")]
                  + self.field(pa, [(0, 5, 8), (3, 1, 7), (1, 1, 6), (0, 1, 5), (2, 1, 4)], init=s_side)]
            tp = VReg("tp")
            pw.append([V("v_lshrrev_b32", tp, 5, lane), V("v_lshlrev_b32", tp, 6, tp), V("v_xor_b32", pa, tp, pa),
                       S(f"s_lshl_b32 {s_side}, {s_c}, 7"), V("v_xor_b32", pa, s_side, pa)])
            self.place(split(pw), F[2], F[2] + 7)
            pw = []
            for qq in range(4):
                pw.append(DSW("ds_write_b128", pa, kacc[4 * qq:4 * qq + 4], 0))
                if qq < 3:
                    pw.append(V("v_xor_b32", pa, 16 * (qq ^ (qq + 1)), pa))
            self.place(pk[:10], F[8] + 1, F[8] + 3)
            self.place(vg_ + pk[10:] + pw, F[8] + 4, bar(e1) - 1)
            r1, r2, r3, r4 = VReg("rp1"), VReg("rp2"), VReg("rv1"), VReg("rv2")
            ta = VReg("ta")
            kv = [self.field(r1, [(2, 2, 8), (4, 2, 11), (4, 1, 7), (3, 1, 6), (2, 1, 5), (0, 1, 3)])
                  + [V("v_bfe_u32", ta, lane, 1, 1), V("v_lshlrev_b32", ta, 4, ta), V("v_xor_b32", r1, ta, r1),
                     S(f"s_lshl_b32 {s_side}, {s_r}, 6"), S(f"s_lshl_b32 {s_t2}, {s_c}, 5"),
                     S(f"s_add_u32 {s_side}, {s_side}, {s_t2}"), V("v_xor_b32", r1, s_side, r1)]]
            kv.append(self.field(r3, [(2, 2, 7), (4, 2, 10), (4, 1, 6), (3, 1, 5), (2, 1, 3)])
                      + [V("v_and_b32", ta, 3, lane), V("v_lshlrev_b32", ta, 3, ta), V("v_xor_b32", r3, ta, r3),
                         S(f"s_lshl_b32 {s_side}, {s_r}, 5"), V("v_xor_b32", r3, s_side, r3)])
            aa = VReg("aa")
            kv.append(self.field(aa, [(4, 2, 9), (0, 4, 2)]))
            self.place(split(kv), F[5], F[6] + 7)
            ones = VReg("ones", 4)
            D1, D2 = VReg("D1", 4), VReg("D2", 4)
            mk = bar(e1)
            for m in range(4):
                fp, fv = VReg("fp", 4), VReg("fv", 4)
                pb = (PH0 if m < 2 else PH1) + (m & 1) * 8192
                kv = []
                for reg, dst, addr in ((r1, fp[0:2], pb), (r2, fp[2:4], pb + 1024), (r3, fv[0:2], VB + m * 4096),
                                       (r4, fv[2:4], VB + m * 4096 + 512)):
                    fix, imm = self.lds(reg, addr)
                    kv += fix + [DSR("ds_read_b64_tr_b16", dst, reg, imm)]
                if m == 0:
                    kv = [V("v_xor_b32", r2, 16, r1), V("v_xor_b32", r4, 16, r3)] + kv
                if m == 1:
                    kv += [V("v_mov_b32", ones[k], 0x3F803F80) for k in range(4)]
                self.place(kv, mk + 2 * m, mk + 2 * m + 1)
                self.place([MFMA(16, D1, fv, fp, D1 if m else 0), MFMA(16, D2, ones, fp, D2 if m else 0)], mk + 2 * m + 3, mk + 2 * m + 4)
            assert mk + 7 < bar(release_at)
            kv = [BSTORE("buffer_atomic_add_f32", D1[k], aa, SW, s_tat, 128 * k, "", "kvat") for k in range(4)]
            kv.append([S("s_mov_b64 exec, 0xffff"), BSTORE("buffer_atomic_add_f32", D2[0], aa, SW, s_tat, 2048, "", "kvat"),
                       S("s_mov_b64 exec, -1")])
            self.place(kv, mk + O("ao", 12), mk + O("ao", 12) + O("asp", 2))
            assert mk + O("ao", 12) + O("asp", 2) < bar(e1 + O("f1d", 4))
            sig(e1 + O("f1d", 4), ["kvat"], s_f1, 1)
            gu = self.gu_pair(accs["g0"], s_hst2, 8, "S2")
            self.place(gu, F[16] + 1, F[16] + O("gue", 10))
            assert F[16] + O("gue", 10) < bar(O("s2", 18))
            sig(O("s2", 18), ["S2"], s_f2sig, 1 << 8)
            self.place(self.gu_epi(accs["gh"], s_hst1, 12, "S3"), F[P2] + 1, F[P2] + O("ghe", 2))
            assert F[P2] + O("ghe", 2) < bar(P2 + O("s3a", 3))
            sig(P2 + O("s3a", 3), ["S3"], s_f2sig, 1 << 16)
        else:
            skip = self.label("nof0")
            tz, tz2 = VReg("tz"), VReg("tz2")
            post(0, [V("v_mov_b32", tz, 1), S(f"s_lshl_b32 {s_side}, {s_j}, 2"), V("v_mov_b32", tz2, s_side),
                     S(f"s_or_b32 {s_side}, {s_rb}, {s_w}"), S(f"s_cmp_lg_u32 {s_side}, 0"), S(f"s_cbranch_scc1 {skip}"),
                     GSTORE("global_store_dword", tz2, tz, sDBG, 0, "sc1", counted=False), LABEL(skip)])
            self.place(split([kv_base]), F[7], F[7] + 4)
            gu = self.gu_pair(accs["g0"], s_hst2, 0, "S1")
            self.place(gu, F[8] + 1, F[8] + O("g0e", 27))
            assert F[8] + O("g0e", 27) < bar(O("s1", 12))
            sig(O("s1", 12), ["S1", "gate"], s_f2sig, 1)
            qacc = accs["q"]
            pq = self.phi_epi(qacc, False)
            for e in range(2):
                for k in range(4):
                    pq.append(SWAP32(qacc[8 * e + k], qacc[8 * e + 4 + k]))
            self.place(pq, F[12] + 1, F[O("pqe", 17)] - 1)
            f1i, f1c = self.poll_cnt(s_f1, 0, 16)
            post(tT - O("pd", 1), f1i)
            chk(tT, f1c)
            TB = slot_of[("T", 0)] * SLOT
            tva, tvb = VReg("tva"), VReg("tvb")
            og = [[V("v_and_b32", tva, 31, lane), V("v_min_u32", tva, 16, tva), V("v_and_b32", tvb, 27, lane),
                   VCMP("v_cmp_eq_u32", "vcc", 17, tvb), V("v_cndmask_b32", tva, tva, tvb, "vcc"),
                   S(f"s_mul_i32 {s_side}, {s_c}, 36"), V("v_add_u32", tva, s_side, tva)]]
            ta = [VReg("ta0"), VReg("ta1")]
            for hh in range(2):
                if hh:
                    og.append(V("v_add_u32", tva, 18, tva))
                og += [V("v_bfe_u32", tvb, tva, 1, 3), V("v_lshlrev_b32", ta[hh], 7, tva), V("v_lshl_add_u32", ta[hh], tvb, 4, ta[hh]),
                       V("v_and_b32", tvb, 32, lane), V("v_xor_b32", ta[hh], tvb, ta[hh]), V("v_add_u32", ta[hh], TB, ta[hh])]
            self.place(og, F[tT - 1], F[tT] + 3)
            og = []
            Traw, Os = {}, {}
            for hh in range(2):
                prev = 0
                for e in range(2):
                    Traw[hh, e] = VReg("Traw", 8)
                    for half in range(2):
                        x = 64 * e + 16 * half
                        if x != prev:
                            og.append(V("v_xor_b32", ta[hh], x ^ prev, ta[hh]))
                        prev = x
                        og.append(DSR("ds_read_b128", Traw[hh, e][4 * half:4 * half + 4], ta[hh], 0))
            m0 = bar(tT + tTd)
            self.place(og, m0, m0 + 2)
            og = []
            for hh in range(2):
                for e in range(2):
                    T = Traw[hh, e]
                    og += [V("v_cvt_pk_bf16_f32", T[k], T[2 * k], T[2 * k + 1]) for k in range(4)]
            for hh in range(2):
                for e in range(2):
                    Os[hh, e] = VReg("O", 16)
                    og.append(MFMA(32, Os[hh, e], Traw[hh, e][0:4], qacc[8 * e + 4 * hh:8 * e + 4 * hh + 4], 0))
            for hh in range(2):
                Op, On = Os[hh, 0], Os[hh, 1]
                og += [V("v_rcp_f32", Op[9], Op[9]), V("v_rcp_f32", On[9], On[9]),
                       V("v_mul_f32", Op[8], Op[9], Op[8]), V("v_fmac_f32", Op[8], On[9], On[8]),
                       V("v_add_f32", Op[8], 0x358637BD, Op[8]), V("v_rcp_f32", Op[8], Op[8]),
                       V("v_mul_f32", Op[9], Op[8], Op[9]), V("v_mul_f32", On[9], Op[8], On[9])]
                og += [V("v_mul_f32", Op[k], Op[9], Op[k]) for k in range(8)]
                og += [V("v_fmac_f32", Op[k], On[9], On[k]) for k in range(8)]
                og += [V("v_cvt_pk_bf16_f32", Op[k], Op[2 * k], Op[2 * k + 1]) for k in range(4)]
                og.append([S(f"s_add_u32 {s_side}, {s_hst2}, {(14 + hh) * 8192}"),
                           BSTORE("buffer_store_dwordx4", Op[0:4], self.vl16, SW, s_side, 0, "sc1", "S4")])
            oe = m0 + 4 + O("oe", 8)
            g1s = F[P2] + 1 if m0 >= F[P2] + 6 else max(oe + 1, F[P2] + 1)
            self.place(og[:16], m0 + 3, m0 + 4)
            self.place(og[16:20], m0 + 5, m0 + 5)
            self.place(og[20:], m0 + 7, oe)
            assert oe < bar(tT + O("s4", 6)) and m0 + 2 < bar(min(b for b in bars if b > tT + tTd))
            sig(tT + O("s4", 6), ["S4"], s_f2sig, 1 << 24)
            gu = self.gu_pair(accs["g1"], s_hst2, 4, "S3")
            self.place(gu, g1s, g1s + O("g1e", 7) - 1)
            assert g1s + O("g1e", 7) - 1 < bar(P2 + O("s3b", 3))
            sig(P2 + O("s3b", 3), ["S3"], s_f2sig, 1 << 16)
        if O("wt", 1):
            w0, n = O("wt0", 6), O("wtn", 4)
            for k in range(n):
                m = F[w0 + k * 8 // n] + O("wto", 5)
                self.place([self.w2touch(k, n)], m, m)
        self.place([KEEP(self.vdummy)], F[P2], F[P2])
        self.place(split(w2base), F[19], F[19] + 4)
        c2, c4, c3 = P2 + O("c2", 2), P2 + O("c4", 11), P2 + O("c3", 6)
        if O("olast", 1):
            c4, c3 = P2 + O("c4", 11), P2 + O("c3", 6)
        assert O("c1", 16) > O("s1", 12) and c2 > O("s2", 18) and c3 > P2 + max(O("s3a", 3), O("s3b", 3)) and c4 > tT + O("s4", 6)
        assert tT > e1 + O("f1d", 4) or A
        hg = O("hg", 3)
        pd = O("pd", 1)
        sets = [(0, 8, range(0, 4), O("c1", 16) - pd, O("c1", 16), O("hg1", 8)), (8, 8, range(8, 12), c2 - pd, c2, hg),
                (24, 8, range(14, 18), c4 - pd, c4, hg), (16, 16, [4, 5, 6, 7, 12, 13], c3 - pd, c3, hg)]
        for shift, want, chs, t_issue, t_chk, gap in sets:
            pi, pc = self.poll_cnt(s_f2wait, shift, want)
            post(t_issue, pi)
            chk(t_chk, pc)
            for k, ch in enumerate(chs):
                m_ld = bar(t_chk) + gap * k
                assert m_ld < F[P2 + chorder.index(ch)] - 2
                self.place([hload(ch)], m_ld, m_ld)
        gv, ga2 = VReg("gv"), VReg("ga2")
        self.place([[S(f"s_lshl_b32 {s_side}, {s_rb2}, 1"), S(f"s_add_u32 {s_side}, {s_side}, {s_c}"),
                     S(f"s_lshl_b32 {s_side}, {s_side}, 7"), S(f"s_add_u32 {s_side}, {s_side}, {WS_G}")]
                    + self.field(ga2, [(0, 5, 2)]) + [BLOAD("buffer_load_dword", gv, ga2, SW, s_side, 0, "sc1")]],
                   F[19] + 1, F[19] + 1)
        og_ = VReg("omg")
        g = [V("v_sub_f32", og_, 1.0, gv)]
        if O("olast", 1):
            accE, accL, sE, sL, m0 = accH, accO, og_, gv, F[P2 + 15]
        else:
            accE, accL, sE, sL, m0 = accO, accH, gv, og_, F[P2 + 13]
        for nt in range(2):
            g += [V("v_mul_f32", accE[nt][k], sE, accE[nt][k]) for k in range(16)]
        self.place(g, m0, m0 + 7)

        last = slot_of[steps[-1][-1]]
        RB = 0 if last >= 5 else 163840 - 69632
        assert not (RB <= last * SLOT < RB + 69632) and not (RB < (last + 1) * SLOT <= RB + 69632)
        self.tail.append(BAR())
        T = self.tail
        wa_, ra_, oa_ = VReg("redw"), VReg("redr"), VReg("outa")
        tr = VReg("tr")
        setup = [S(f"s_mul_i32 {s_side}, {s_w}, 8704"), S(f"s_add_u32 {s_side}, {s_side}, {RB}"),
                 V("v_and_b32", tr, 31, lane), S(f"s_movk_i32 {s_t2}, 272"), V("v_mul_u32_u24", wa_, s_t2, tr),
                 V("v_add_u32", wa_, s_side, wa_)] + self.field(wa_, [(5, 1, 4)], init=wa_)
        setup += [S(f"s_mul_i32 {s_side}, {s_c}, {4 * 8704}"), S(f"s_mul_i32 {s_t1}, {s_r}, {8 * 272}"),
                  S(f"s_add_u32 {s_side}, {s_side}, {s_t1}"), S(f"s_add_u32 {s_side}, {s_side}, {RB}"),
                  V("v_lshrrev_b32", tr, 4, lane), V("v_mul_u32_u24", ra_, s_t2, tr), V("v_add_u32", ra_, s_side, ra_)]
        setup += self.field(ra_, [(0, 4, 4)], init=ra_)
        setup += [S(f"s_lshl_b32 {s_side}, {s_w}, 13")] + self.field(oa_, [(4, 2, 10), (0, 4, 3)], init=s_side)
        self.place([setup], F[P2 + 13], F[P2 + 13])
        T.append("STAMP")
        for nt in range(2):
            for qq in range(4):
                T += [V("v_fmac_f32", accE[nt][4 * qq + k], sL, accL[nt][4 * qq + k]) for k in range(4)]
                T.append(DSW("ds_write_b128", wa_, accE[nt][4 * qq:4 * qq + 4], 128 * nt + 32 * qq))
        T += [WAITLGKM(), BAR()]
        parts = {}
        for i in range(2):
            for kq in range(4):
                parts[i, kq] = VReg("part", 4)
                T.append(DSR("ds_read_b128", parts[i, kq], ra_, kq * 8704 + i * 4 * 272))
        for i in range(2):
            for k in range(4):
                T.append(V("v_add_f32", parts[i, 0][k], parts[i, 0][k], parts[i, 1][k]))
                T.append(V("v_add_f32", parts[i, 2][k], parts[i, 2][k], parts[i, 3][k]))
            for k in range(4):
                T.append(V("v_add_f32", parts[i, 0][k], parts[i, 0][k], parts[i, 2][k]))
            T += [V("v_cvt_pk_bf16_f32", parts[i, 0][0], parts[i, 0][0], parts[i, 0][1]),
                  V("v_cvt_pk_bf16_f32", parts[i, 0][1], parts[i, 0][2], parts[i, 0][3])]
            if i:
                T.append(S(f"s_movk_i32 {s_side}, 4096"))
            T.append(BSTORE("buffer_store_dwordx2", parts[i, 0][0:2], oa_, SOUT, s_side if i else 0))
        if OPT["stamp"]:
            T += [WAITALL(), "STAMP"]
            sa = VReg("sa")
            T += [S(f"s_lshl_b32 {s_side}, s2, 3"), S(f"s_add_u32 {s_side}, {s_side}, {s_w}"), S(f"s_lshl_b32 {s_side}, {s_side}, 8"),
                  S(f"s_add_u32 {s_side}, {s_side}, {WS_STAMP}"), V("v_lshlrev_b32", sa, 2, lane),
                  BSTORE("buffer_store_dword", self.vst, sa, SW, s_side)]
            if O("trace", 0):
                T += [S(f"s_lshl_b32 {s_side}, s2, 3"), S(f"s_add_u32 {s_side}, {s_side}, {s_w}"), S(f"s_lshl_b32 {s_side}, {s_side}, 10"),
                      S(f"s_add_u32 {s_side}, {s_side}, {0xA00000}")]
                T += [BSTORE("buffer_store_dword", self.vtr[k], sa, SW, s_side, 256 * k) for k in range(4)]
            if "ea" in OPT:
                lp = self.label("echo")
                T += [RL(s_t0, self.vst, OPT["ea"]), RL(s_t1, self.vst, OPT["eb"]), RL(s_t2, self.vst, 42),
                      S(f"s_sub_u32 {s_t0}, {s_t1}, {s_t0}"), S(f"s_mul_i32 {s_t0}, {s_t0}, {OPT.get('em', 4)}"),
                      S(f"s_min_u32 {s_t0}, {s_t0}, 100000"), LABEL(lp), S(f"s_memrealtime {s_ts}"), S("s_waitcnt lgkmcnt(0)"),
                      S(f"s_sub_u32 s94, s94, {s_t2}"), S(f"s_cmp_lt_u32 s94, {s_t0}"), S(f"s_cbranch_scc1 {lp}")]
            if OPT.get("dbgt", 0):
                d1, d2 = VReg("d1"), VReg("d2")
                for k, (idx, inv) in enumerate([(0, 1), (0, 0), (3, 0), (11, 0), (23, 0), (31, 0), (41, 0), (42, 0)]):
                    T += [RL(s_side, self.vst, idx)]
                    if inv:
                        T += [S(f"s_not_b32 {s_side}, {s_side}")]
                    T += [V("v_mov_b32", d1, s_side), V("v_mov_b32", d2, 32 + 4 * k), S("s_mov_b64 exec, 1"),
                          GSTORE("global_atomic_umax", d2, d1, sDBG), S("s_mov_b64 exec, -1")]

        out = list(P)
        out += [WAITVM(*steps[0]), BAR()] + self.stamp_issue()
        if O("prio", 0):
            out.append(S("s_setprio 2"))
        for m in range(D):
            out += M[m][0]
        step_at = {F[tt + 1] - D: tt for tt in range(len(steps) - 1)}
        pend = []
        for m in range(len(M)):
            if m in step_at:
                tt = step_at[m]
                out.append(COMMENT(f"---- end of step {tt}"))
                if tt not in bars:
                    assert tt not in self.prebar and tt not in self.prechk, tt
                    out += self.stamp_collect()[1:] + self.stamp_issue()
                elif O("nolg", 0) and tt not in self.lgbar and tt != len(steps) - 2:
                    out += self.stamp_collect()[1:] + self.preprobe.get(tt, [])
                else:
                    out += [WAITLGKM()] + self.stamp_collect() + self.preprobe.get(tt, [])
                if tt in bars:
                    out += [WAITVM(*([it for it in need if need[it] == tt] + self.prebar.get(tt, [])))] + self.prechk.get(tt, [])
                    out += [BAR()] + ([S("s_setprio 3")] if O("prio", 0) else []) + self.stamp_issue()
                out += self.postbar.get(tt, [])
                assert not pend
                pend = [g for it in issue_at[tt] for g in self.dma_item(it, slot_of[it])]
            if m + D < len(M):
                out += M[m + D][0]
            out.append(M[m][1])
            if O("trace", 0):
                pair = ("s[96:97]", "s96") if m & 1 else ("s[12:13]", "s12")
                if m >= 2:
                    tv = self.vtr[(m - 2) >> 6]
                    out.append(Inst("v_writelane_b32", [tv.ref(), pair[1], f"{(m - 2) & 63}"], [tv], [tv], "valu"))
                out.append(Inst("s_memtime", [pair[0]], kind="smem"))
            if O("prio", 0):
                b0 = max([x for x in step_at if x <= m] + [-D if O("prio0", 1) else 0])
                b1 = min([x for x in step_at if x > m] + [len(M)])
                pr = lambda k: 3 - min(3, (k - b0) * 4 // (b1 - b0))
                nx = pr(m + 1)
                if nx != pr(m) and m + 1 != b1:
                    out.append(S(f"s_setprio {nx}"))
            if pend:
                out += pend.pop(0)
                nb = min(x for x in list(step_at) + [len(M)] if x > m)
                while len(pend) > nb - m - 1:
                    out += pend.pop(0)
            for g in self.side.get(m, []):
                out += g
        for x in T:
            if x == "STAMP":
                out += ([WAITLGKM()] + self.stamp_collect() if OPT["stamp"] else []) + self.stamp()
            else:
                out.append(x)
        out.append(S("s_endpgm"))
        return out

    def text(self):
        prog = self.build()
        if OPT.get("nost", 0):
            prog = [i for i in prog if not (i.kind == "vstore" and i.tag in ("S1", "S2", "S3", "S4", "kvat"))]
        if OPT.get("l2hit", 0):
            for i in prog:
                h = OPT["l2hit"]
                if (i.kind == "dma" and i.tag[0] != "w2" and h & 1) or (i.kind == "dma" and i.tag[0] == "w2" and h & 2) or (
                        i.kind == "vload" and i.op == "buffer_load_dwordx4" and h & 4):
                    i.ops[-1] = 0
        prog, peak = finish(prog, 256)
        lines = [i.text() for i in prog]
        for slow, back, fn in self.slow:
            loop = slow + "_l"
            lines += [f"{slow}:", f"    s_mov_b32 {s_spin}, {OPT['spin']}", f"{loop}:"]
            lines += ["    " + x for x in fn()]
            lines += [f"    s_cbranch_scc1 {back}", "    s_sleep %d" % OPT.get("sleep", 2), f"    s_sub_u32 {s_spin}, {s_spin}, 1",
                      f"    s_cmp_lg_u32 {s_spin}, 0", f"    s_cbranch_scc1 {loop}", f"    s_branch {back}"]
        lines.append(f"L{self.typ}_end:")
        n = {}
        for i in prog:
            n[i.kind] = n.get(i.kind, 0) + 1
        print(self.typ, "peak vgpr", peak, n, file=sys.stderr)
        F = self.first
        for tt in range(len(F) - 1):
            print(self.typ, tt, " ".join("%.0f" % sum(i.cost for g in self.side.get(m, []) for i in g) for m in range(F[tt], F[tt + 1])), file=sys.stderr)
        lines.insert(0, "; probes " + self.typ + " " + " ".join(getattr(self, "probes", [])))
        print(self.typ, "issue_at", {k: [f"{a}{b}@{self.slot_of[(a, b)]}" for a, b in v] for k, v in self.issue_at.items() if v},
              file=sys.stderr)
        return "\n".join(lines)


def main():
    ref = open(f"cdna_kernels/{NAME}.s.ref").read().splitlines()
    head = [l for l in ref if l.startswith(";") and "@launch" not in l]
    o = head + ["; @launch grid=(256,1,1) block=(512,1,1) lds=163840",
                '.amdgcn_target "amdgcn-amd-amdhsa--gfx950"', ".text", f".globl {NAME}_kernel", ".p2align 8",
                f".type {NAME}_kernel,@function", f"{NAME}_kernel:"]
    if OPT["stamp"]:
        o.append("    " + ("s_memrealtime" if OPT["stamp"] == 1 else "s_memtime") + " s[96:97]")
    o += ["    " + x for x in f"""s_cmp_ge_u32 s2, 256
s_cbranch_scc1 L_exit
s_load_dwordx16 s[4:19], s[0:1], 0
s_load_dwordx8 s[20:27], s[0:1], 64
s_and_b32 {s_t0}, s2, 7
s_lshr_b32 {s_t1}, s2, 3
s_and_b32 {s_rb}, {s_t0}, 1
s_lshl_b32 {s_rb}, {s_rb}, 3
s_and_b32 {s_t2}, {s_t1}, 7
s_add_u32 {s_rb}, {s_rb}, {s_t2}
s_lshr_b32 {s_cg}, {s_t0}, 1
s_lshl_b32 {s_cg}, {s_cg}, 2
s_lshr_b32 {s_t2}, {s_t1}, 3
s_add_u32 {s_cg}, {s_cg}, {s_t2}
s_lshr_b32 {s_j}, {s_cg}, 1
s_lshl_b32 {s_rb2}, {s_t0}, 2
s_and_b32 {s_t2}, {s_t1}, 3
s_add_u32 {s_rb2}, {s_rb2}, {s_t2}
s_lshr_b32 {s_cb}, {s_t1}, 2
s_bitcmp1_b32 {s_cg}, 0
s_cbranch_scc1 L_typeB""".splitlines()]
    o.append(Prog("A").text())
    o.append("L_exit:\n    s_endpgm")
    o.append(".p2align 6\nL_typeB:")
    o.append(Prog("B").text())
    o.append(f""".section .rodata,"a"
.p2align 6
.amdhsa_kernel {NAME}_kernel
  .amdhsa_next_free_vgpr 256
  .amdhsa_next_free_sgpr 102
  .amdhsa_accum_offset 256
  .amdhsa_group_segment_fixed_size 0
  .amdhsa_kernarg_size 96
  .amdhsa_user_sgpr_count 2
  .amdhsa_user_sgpr_kernarg_segment_ptr 1
  .amdhsa_system_sgpr_workgroup_id_x 1
.end_amdhsa_kernel""")
    open(sys.argv[1], "w").write("\n".join(o) + "\n")


main()
```

```python
import re


class VReg:
    def __init__(self, name, n=1, align=None, fixed=None, long=False):
        self.name, self.n = name, n
        self.align = align if align else (1 if n == 1 else 2 if n < 4 else 4)
        self.phys = fixed
        self.fixed = fixed is not None
        self.long = long
        self.bias = 0

    def __getitem__(self, i):
        if isinstance(i, slice):
            a = i.start or 0
            b = self.n if i.stop is None else i.stop
            assert 0 <= a < b <= self.n, (self.name, a, b)
            return Ref(self, a, b - a)
        assert 0 <= i < self.n, (self.name, i)
        return Ref(self, i, 1)

    def ref(self):
        return Ref(self, 0, self.n)


class Ref:
    def __init__(self, reg, off, cnt):
        self.reg, self.off, self.cnt = reg, off, cnt

    def __getitem__(self, i):
        if isinstance(i, slice):
            a = i.start or 0
            b = self.cnt if i.stop is None else i.stop
            assert 0 <= a < b <= self.cnt
            return Ref(self.reg, self.off + a, b - a)
        assert 0 <= i < self.cnt
        return Ref(self.reg, self.off + i, 1)

    def regs(self):
        b = self.reg.phys + self.off
        return range(b, b + self.cnt)

    def text(self):
        b = self.reg.phys + self.off
        if self.cnt == 1:
            return f"v{b}"
        assert b % 2 == 0, (self.reg.name, b)
        return f"v[{b}:{b + self.cnt - 1}]"


class Neg:
    def __init__(self, r):
        self.r = rf(r)


def rf(x):
    return x.ref() if isinstance(x, VReg) else x


def optext(x):
    if isinstance(x, Ref):
        return x.text()
    if isinstance(x, Neg):
        return "-" + x.r.text()
    if isinstance(x, float):
        return repr(x)
    if isinstance(x, int):
        return str(x) if -16 <= x <= 64 else hex(x & 0xFFFFFFFF)
    return str(x)


TRANS = ("v_exp_f32", "v_log_f32", "v_rcp_f32", "v_rsq_f32", "v_sqrt_f32")


class Inst:
    def __init__(self, op, ops=(), defs=(), uses=(), kind="salu", suffix="", tag=None, counted=True,
                 sdefs=(), suses=(), cost=1.0):
        self.op, self.ops, self.kind, self.suffix = op, list(ops), kind, suffix
        self.defs = [rf(d) for d in defs]
        self.uses = [rf(u) for u in uses]
        self.tag, self.counted = tag, counted
        self.sdefs, self.suses = set(sdefs), set(suses)
        self.cost = cost

    def text(self):
        if self.kind == "label":
            return self.op + ":"
        if self.kind == "comment":
            return "; " + self.op
        s = self.op
        if self.ops:
            s += " " + ", ".join(optext(o) for o in self.ops)
        if self.suffix:
            s += " " + self.suffix
        return "    " + s


def sregs(x):
    if not isinstance(x, str):
        return set()
    m = re.fullmatch(r"s\[(\d+):(\d+)\]", x)
    if m:
        return {f"s{i}" for i in range(int(m.group(1)), int(m.group(2)) + 1)}
    if re.fullmatch(r"s\d+", x):
        return {x}
    if x == "vcc":
        return {"vcc"}
    return set()


def vsrc(xs):
    out = []
    for x in xs:
        if isinstance(x, Neg):
            out.append(x.r)
        elif isinstance(x, (Ref, VReg)):
            out.append(rf(x))
    return out


def V(op, dst, *srcs, suffix="", rmw=False):
    srcs = [rf(s) for s in srcs]
    dst = rf(dst)
    base = op.replace("_e64", "").replace("_e32", "")
    kind = "trans" if base in TRANS else "valu"
    if "row_" in suffix or "quad_perm" in suffix:
        kind = "dpp"
    if base.startswith("v_dot2"):
        kind = "dot"
    uses = vsrc(srcs) + ([dst] if rmw or base in ("v_fmac_f32",) else [])
    su = set()
    for s in srcs:
        su |= sregs(s)
    vop3 = len(srcs) >= 3 or base in ("v_cvt_pk_bf16_f32",) or kind == "dpp" or any(isinstance(x, int) and not -16 <= x <= 64 for x in srcs)
    return Inst(op, [dst] + srcs, [dst], uses, kind, suffix, suses=su, cost=3.0 if kind == "trans" else 1.6 if vop3 else 1.0)


def VCMP(op, sdst, a, b):
    a, b = rf(a), rf(b)
    return Inst(op, [sdst, a, b], [], vsrc([a, b]), "valu", sdefs=sregs(sdst), suses=sregs(a) | sregs(b))


def RFL(sdst, src):
    src = rf(src)
    return Inst("v_readfirstlane_b32", [sdst, src], [], [src], "readlane", sdefs=sregs(sdst))


def RL(sdst, src, lane):
    src = rf(src)
    return Inst("v_readlane_b32", [sdst, src, lane], [], [src], "readlane", sdefs=sregs(sdst))


def SWAP32(a, b):
    a, b = rf(a), rf(b)
    return Inst("v_permlane32_swap_b32", [a, b], [a, b], [a, b], "permlane")


def MFMA(shape, d, a, b, c):
    d, a, b = rf(d), rf(a), rf(b)
    c = rf(c)
    op = {32: "v_mfma_f32_32x32x16_bf16", 16: "v_mfma_f32_16x16x32_bf16"}[shape]
    i = Inst(op, [d, a, b, c], [d], [a, b] + vsrc([c]), "mfma", cost=3.0)
    i.passes = 8 if shape == 32 else 4
    i.a, i.b, i.c, i.d = a, b, (c if isinstance(c, Ref) else None), d
    return i


def S(text, m0=False, cost=0.5):
    op, _, rest = text.partition(" ")
    i = Inst(op, [rest] if rest else [], kind="salu", cost=cost)
    i.m0def = m0 or rest.startswith("m0,")
    return i


def DSR(op, dst, addr, off, tag=None):
    assert 0 <= off < 65536, off
    dst, addr = rf(dst), rf(addr)
    return Inst(op, [dst, addr], [dst], [addr], "ds_read", f"offset:{off}" if off else "", tag=tag)


def DSW(op, addr, src, off, tag=None):
    assert 0 <= off < 65536, off
    src, addr = rf(src), rf(addr)
    return Inst(op, [addr, src], [], [addr, src], "ds_write", f"offset:{off}" if off else "", tag=tag)


def _bsuf(off, flags):
    assert 0 <= off < 4096, off
    return ("offen" + (f" offset:{off}" if off else "") + (" " + flags if flags else ""))


def DMA(voff, srd, soff, off=0, tag=None, flags=""):
    voff = rf(voff)
    i = Inst("buffer_load_dwordx4", [voff, srd, soff], [], [voff], "dma", _bsuf(off, flags) + " lds", tag=tag,
             suses=sregs(srd) | sregs(soff))
    return i


def BLOAD(op, dst, voff, srd, soff, off=0, flags="", tag=None, counted=True):
    dst, voff = rf(dst), rf(voff)
    return Inst(op, [dst, voff, srd, soff], [dst], [voff], "vload", _bsuf(off, flags), tag=tag, counted=counted,
                suses=sregs(srd) | sregs(soff))


def BSTORE(op, src, voff, srd, soff, off=0, flags="", tag=None, counted=True):
    src, voff = rf(src), rf(voff)
    i = Inst(op, [src, voff, srd, soff], [], [src, voff], "vstore", _bsuf(off, flags), tag=tag, counted=counted,
             suses=sregs(srd) | sregs(soff))
    i.data = src
    return i


def GLOAD(op, dst, voff, sbase, off=0, flags="", tag=None, counted=True):
    dst, voff = rf(dst), rf(voff)
    suf = ((f"offset:{off}" if off else "") + " " + flags).strip()
    return Inst(op, [dst, voff, sbase], [dst], [voff], "vload", suf, tag=tag, counted=counted, suses=sregs(sbase))


def GSTORE(op, voff, src, sbase, off=0, flags="", tag=None, counted=True):
    src, voff = rf(src), rf(voff)
    suf = ((f"offset:{off}" if off else "") + " " + flags).strip()
    i = Inst(op, [voff, src, sbase], [], [src, voff], "vstore", suf, tag=tag, counted=counted, suses=sregs(sbase))
    i.data = src
    return i


def BAR():
    return Inst("s_barrier", kind="barrier")


def WAITVM(*tags):
    i = Inst("waitvm", kind="pw_vm", cost=0.3)
    i.tags = set(tags)
    return i


def WAITLGKM():
    return Inst("waitlgkm", kind="pw_lgkm", cost=0.3)


def WAITALL():
    return Inst("waitall", kind="pw_all")


def LABEL(n):
    return Inst(n, kind="label", cost=0)


def COMMENT(n):
    return Inst(n, kind="comment", cost=0)


def KEEP(*refs):
    return Inst("keep", uses=[rf(r) for r in refs], kind="keep", cost=0)


def allocate(prog, limit=256, reserved=()):
    first, last = {}, {}
    for idx, ins in enumerate(prog):
        for r in ins.defs + ins.uses:
            o = r.reg
            if o not in first:
                first[o] = idx
                last[o] = [-1] * o.n
            for e in range(r.off, r.off + r.cnt):
                last[o][e] = idx
    busy = [-1] * limit
    for p in reserved:
        busy[p] = 1 << 30
    fixed = [o for o in first if o.fixed]
    for o in fixed:
        for e in range(o.n):
            busy[o.phys + e] = max(busy[o.phys + e], last[o][e])
    import random
    objs = sorted((o for o in first if not o.fixed), key=lambda o: first[o])
    busy0 = list(busy)
    err = None
    for attempt in range(400):
        rnd = random.Random(attempt)
        busy = list(busy0)
        peak = 0
        ok = True
        for o in objs:
            st = first[o]
            end = max(last[o])
            cands = [b for b in range(0, limit - o.n + 1, o.align) if all(busy[b + e] < st for e in range(o.n))]
            if not cands:
                live = sum(1 for x in busy if x >= st)
                err = f"out of VGPRs for {o.name} (n={o.n}) at inst {st}; live={live}"
                ok = False
                break
            if o.long or end - st > 600:
                b = cands[-1]
            elif attempt == 0:
                b = cands[0]
            else:
                def score(b):
                    lo = b
                    while lo > 0 and busy[lo - 1] < st:
                        lo -= 1
                    hi = b + o.n
                    while hi < limit and busy[hi] < st:
                        hi += 1
                    edge = min(b - lo, hi - b - o.n)
                    return (hi - lo) + 4 * edge + rnd.random() * (attempt % 8) * 3
                b = min(cands, key=score)
            o.phys = b
            for e in range(o.n):
                busy[b + e] = max(last[o][e], st)
            peak = max(peak, sum(1 for x in busy if x >= st))
        if ok:
            return peak
    raise RuntimeError(err)


def insert_waits(prog):
    out = []
    vm, lg = [], []
    loose = False

    def need(q, pred):
        p = -1
        for k, e in enumerate(q):
            if pred(e):
                p = k
        return p

    for ins in prog:
        touched = set()
        for r in ins.defs + ins.uses:
            touched.update(r.regs())
        if ins.kind == "keep":
            continue
        pv = need(vm, lambda e: e[1] & touched)
        pl = need(lg, lambda e: e[1] & touched)
        if ins.kind == "pw_vm":
            pv = need(vm, lambda e: e[0] in ins.tags)
        elif ins.kind == "pw_lgkm":
            pl = len(lg) - 1
        elif ins.kind == "pw_all":
            pv, pl = len(vm) - 1, len(lg) - 1
        parts = []
        if pv >= 0 or ins.kind == "pw_all":
            n = sum(e[2] for e in vm[pv + 1:])
            assert n <= 63
            parts.append(f"vmcnt({n})")
            if getattr(ins, "blk", None) is not None:
                pass
            elif getattr(ins, "cond", False):
                assert vm[pv][2] == 0 and pl < 0
                del vm[pv]
            else:
                del vm[:pv + 1]
        if pl >= 0 or ins.kind == "pw_all":
            n = min(len(lg) - 1 - pl, 15)
            parts.append(f"lgkmcnt({n})")
            if getattr(ins, "blk", None) is None:
                del lg[:len(lg) - n]
        elif ins.kind == "pw_lgkm" and loose:
            parts.append("lgkmcnt(0)")
        if ins.kind in ("pw_lgkm", "pw_all"):
            loose = False
        if parts:
            w = Inst("s_waitcnt", [" ".join(parts)], kind="wait")
            w.blk = getattr(ins, "blk", None)
            out.append(w)
        if ins.kind.startswith("pw_"):
            continue
        out.append(ins)
        dregs = set()
        for r in ins.defs:
            dregs.update(r.regs())
        if ins.kind in ("dma", "vload", "vstore"):
            if ins.counted or dregs or getattr(ins, "qentry", False):
                vm.append((ins.tag, dregs, 1 if ins.counted else 0))
                assert len(vm) <= 60, "too many outstanding vm ops"
        elif ins.kind == "ds_write" and getattr(ins, "blk", None) is not None:
            loose = True
        elif ins.kind in ("ds_read", "ds_write"):
            assert getattr(ins, "blk", None) is None
            lg.append((ins.tag, dregs))
        elif ins.kind == "smem":
            lg += [(None, set()), (None, set())]
    return out


VALU_KINDS = ("valu", "trans", "dpp", "permlane", "dot", "readlane")


def _regs(refs):
    s = set()
    for r in refs:
        s.update(r.regs())
    return s


def required_gap(p, c):
    need = 0
    pd, pu = p._d, p._u
    cd, cu = c._d, c._u
    if p.kind in VALU_KINDS:
        if pd & cu:
            if c.kind == "mfma":
                need = max(need, 2)
            if c.kind in ("permlane", "dpp"):
                need = max(need, 2)
            if c.kind == "readlane":
                need = max(need, 1)
            if p.kind == "trans" and c.kind in VALU_KINDS and c.kind != "trans":
                need = max(need, 1)
        if p.kind == "dot" and (pd & (cu | cd)) and not (c.kind == "dot"):
            need = max(need, 3)
        if p.sdefs & c.suses:
            if c.kind in VALU_KINDS:
                need = max(need, 2)
            if c.kind in ("dma", "vload", "vstore"):
                need = max(need, 5)
        if p.sdefs and c.kind == "salu":
            txt = " ".join(str(o) for o in c.ops)
            for s in p.sdefs:
                if re.search(r"\b" + s + r"\b", txt):
                    need = max(need, 1)
    if p.kind == "mfma":
        big = 12 if p.passes == 8 else 8
        ovl = 10 if p.passes == 8 else 6
        war = 7 if p.passes == 8 else 3
        if c.kind == "mfma":
            ab = set(c.a.regs()) | set(c.b.regs())
            if pd & ab:
                need = max(need, big)
            if c.c is not None and pd & set(c.c.regs()):
                same = list(c.c.regs()) == list(p.d.regs()) and c.passes == p.passes
                if not same:
                    need = max(need, ovl)
            elif pd & cd and not (c.c is not None and list(c.c.regs()) == list(p.d.regs())):
                need = max(need, big)
        elif c.kind in VALU_KINDS:
            if pd & (cu | cd):
                need = max(need, big)
            if p.c is not None and set(p.c.regs()) & cd:
                need = max(need, war)
        elif c.kind in ("ds_read", "ds_write", "dma", "vload", "vstore"):
            if pd & (cu | cd):
                need = max(need, big)
            if p.c is not None and set(p.c.regs()) & cd:
                need = max(need, war)
    if p.kind == "vstore" and p.data.cnt >= 2:
        if set(p.data.regs()) & cd:
            need = max(need, 2)
    if p.kind == "salu" and getattr(p, "m0def", False) and c.kind == "dma":
        need = max(need, 1)
    return need


def insert_nops(prog):
    out = []
    for ins in prog:
        ins._d, ins._u = _regs(ins.defs), _regs(ins.uses)
        if ins.kind in ("label", "comment"):
            out.append(ins)
            continue
        dist, pad, scanned = 0, 0, 0
        for p in reversed(out):
            if p.kind in ("label", "comment"):
                continue
            g = required_gap(p, ins)
            if g > dist:
                pad = max(pad, g - dist)
            pb = getattr(p, "blk", None)
            scanned += 1
            if pb is None or pb == getattr(ins, "blk", None):
                dist += p.states if p.kind == "nop" else 1
            if dist >= 13:
                break
        if pad:
            n = Inst("s_nop", [pad - 1], kind="nop")
            n.states = pad
            n.blk = getattr(ins, "blk", None)
            n._d, n._u = set(), set()
            out.append(n)
        out.append(ins)
    return out


def finish(prog, limit=256, reserved=()):
    peak = allocate(prog, limit, reserved)
    prog = insert_waits(prog)
    prog = insert_nops(prog)
    return prog, peak
```

```python
import os, sys
sys.path.insert(0, os.path.dirname(os.path.abspath(__file__)))
from asmfw import *

NAME = "gated_mix__linear_kernel_hedgehog__glu_gated_glu__prompt"
OPT = dict(stamp=0, D=2, nslot=10, spin=1 << 22)
for a in sys.argv[2:]:
    k, v = a.split("=")
    OPT[k] = int(v)
D = OPT["D"]
SLOT = 16384

WS_H = 0
WS_Z = 0x900000
ZBLK = 10240
THEAD = 2304
WS_G = 0x920000
WS_STAMP = 0x930000
WS_SIZE = 0xC00000 if OPT.get("trace", 0) else 0xA00000

sX, sQKV, sPHI, sWO, sWG, sWU, sWD = "s[4:5]", "s[6:7]", "s[8:9]", "s[10:11]", "s[14:15]", "s[16:17]", "s[18:19]"
sGW, sOUTP, sDBG, sWS = "s[20:21]", "s[22:23]", "s[24:25]", "s[26:27]"
SX, SQ, SG, SU, SD, SO, SW, SOUT = ("s[28:31]", "s[32:35]", "s[36:39]", "s[40:43]", "s[44:47]", "s[48:51]",
                                    "s[52:55]", "s[56:59]")
s_w, s_r, s_c, s_j, s_rb, s_rb2, s_cb, s_cg = "s60", "s61", "s62", "s63", "s64", "s65", "s66", "s67"
s_w2048, s_u, s_h, s_R1, s_R3, s_R3h, s_L, s_nL = "s68", "s69", "s70", "s71", "s72", "s73", "s74", "s75"
s_so0, s_so1, s_side = "s76", "s77", "s78"
s_hst2, s_hst1, s_hld, s_tat, s_tld, s_f2sig, s_f2wait, s_f1 = "s79", "s80", "s81", "s82", "s83", "s84", "s85", "s86"
s_t0, s_t1, s_t2 = "s87", "s88", "s89"
s_mask = "s[90:91]"
s_spin, s_ph = "s92", "s93"
s_RA, s_tw = "s98", "s99"
SPHI = "s[8:11]"
SGH, SUH = SX, SQ
s_ts = "s[94:95]"
s_rot, s_roth, s_rot2 = "s100", "s101", "s3"


def srd_lo(s):
    return int(s[2:s.index(":")])


class Prog:
    def __init__(self, typ):
        self.typ = typ
        self.pro = []
        self.main = []
        self.first = {}
        self.side = {}
        self.prebar = {}
        self.tail = []
        self.slow = []
        self.v0 = VReg("v0", fixed=0)
        self.nstamp = 0
        self.vst = VReg("stamps", long=True) if OPT["stamp"] else None
        self.nlab = 0

    def label(self, n):
        self.nlab += 1
        return f"L{self.typ}_{n}_{self.nlab}"

    def stamp(self):
        if not OPT["stamp"]:
            return []
        return [WAITLGKM()] + self.stamp_issue() + self.stamp_collect()

    def stamp_issue(self):
        if not OPT["stamp"]:
            return []
        self.stamp_pending = True
        return [S(("s_memrealtime " if OPT["stamp"] == 1 else "s_memtime ") + s_ts)]

    def stamp_collect(self):
        if not OPT["stamp"] or not getattr(self, "stamp_pending", False):
            return []
        self.stamp_pending = False
        k = self.nstamp
        self.nstamp += 1
        i = Inst("v_writelane_b32", [self.vst.ref(), "s94", k], [self.vst], [self.vst], "valu")
        return [S("s_waitcnt lgkmcnt(0)"), i]

    def probe(self, name):
        if not OPT["stamp"] or not OPT.get("probe", 0):
            return []
        self.probes = getattr(self, "probes", [])
        k = 44 + len(self.probes)
        assert k < 64
        self.probes.append(name)
        i = Inst("v_writelane_b32", [self.vst.ref(), "s96", k], [self.vst], [self.vst], "valu")
        return [S(("s_memrealtime " if OPT["stamp"] == 1 else "s_memtime ") + "s[96:97]"), WAITLGKM(), S("s_waitcnt lgkmcnt(0)"), i]

    def place(self, groups, m0, m1):
        groups = [g if isinstance(g, list) else [g] for g in groups]
        tot = sum(sum(i.cost for i in g) for g in groups) or 1.0
        n = m1 - m0 + 1
        acc = 0.0
        for g in groups:
            m = m0 + min(n - 1, int(acc / tot * n))
            self.side.setdefault(m, []).append(g)
            acc += sum(i.cost for i in g)

    def stag(self, groups, t0, t1, first=None):
        import copy
        F = self.first
        groups = [g if isinstance(g, list) else [g] for g in groups]
        ends = [b for b in sorted(self.bars) if t0 <= b <= t1]
        iv = []
        for b in ends:
            p = max(x for x in self.bars if x < b)
            iv.append((F[p + 1] - D, F[b + 1] - D))
        tot = sum(sum(i.cost for i in g) for g in groups)
        wsum = sum(b - a for a, b in iv)
        k, acc, lim = 0, 0.0, 0.0
        for n, (a, b) in enumerate(iv):
            lim += tot * (b - a) / wsum
            blk = []
            while k < len(groups) and (acc < lim - 1e-9 or n == len(iv) - 1):
                blk += groups[k]
                acc += sum(i.cost for i in groups[k])
                k += 1
            for c, m in ((0, max(a + OPT.get("k0", 1), first if first and n == 0 else 0)), (1, b - 1)):
                skip = self.label("sg")
                body = [copy.copy(i) for i in blk]
                if OPT.get("sp", 0):
                    body = [S("s_setprio 0")] + body + [S("s_setprio 1")]
                for i in body:
                    i.blk = skip
                    if i.kind == "vstore":
                        i.counted = False
                        i.qentry = c == 1
                g = [S(f"s_cmp_lg_u32 {s_c}, {c}"), S(f"s_cbranch_scc1 {skip}")] + body + [LABEL(skip)]
                if c:
                    self.late.setdefault(m, []).append(g)
                else:
                    self.side.setdefault(m, []).append(g)

    def lds(self, base, addr):
        fix = []
        if not (0 <= addr - base.bias < 65536):
            nb = addr & ~0xFFFF
            fix.append(V("v_add_u32", base, nb - base.bias, base))
            base.bias = nb
        return fix, addr - base.bias

    def trfrag(self, base, addr, step2):
        f = VReg("frag", 4)
        fix, imm = self.lds(base, addr)
        assert imm + step2 < 65536
        return f, fix + [DSR("ds_read_b64_tr_b16", f[0:2], base, imm), DSR("ds_read_b64_tr_b16", f[2:4], base, imm + step2)]

    def field(self, dst, fields, init=None):
        out = []
        t = VReg("ft")
        cur = init
        for lo, width, pos in fields:
            out.append(V("v_bfe_u32", t, self.lane, lo, width))
            if cur is None:
                out.append(V("v_lshlrev_b32", dst, pos, t))
            else:
                out.append(V("v_lshl_add_u32", dst, t, pos, cur))
            cur = dst
        return out

    def srd(self, s, ptr, shift, total, minus=0):
        a, p = srd_lo(s), srd_lo(ptr)
        o = []
        if shift is None:
            o += [S(f"s_mov_b32 s{a}, s{p}"), S(f"s_mov_b32 s{a+1}, s{p+1}"), S(f"s_mov_b32 s{a+2}, {total}")]
        else:
            o += [S(f"s_add_u32 s{a}, s{p}, {shift}"), S(f"s_addc_u32 s{a+1}, s{p+1}, 0"),
                  S(f"s_sub_u32 s{a+2}, {total + minus}, {shift}")]
            if minus:
                o += [S(f"s_sub_u32 s{a}, s{a}, {minus}"), S(f"s_subb_u32 s{a+1}, s{a+1}, 0")]
        o.append(S(f"s_mov_b32 s{a+3}, 0x20000"))
        return o

    def poll(self, name, load, test, regs):
        s0, s1, slow, back = self.label("np"), self.label("nc"), self.label("slow"), self.label("back")
        ld = load()
        ld.counted = False
        issue = [S(f"s_cmp_lg_u32 {s_w}, 0"), S(f"s_cbranch_scc1 {s0}"), ld, LABEL(s0)]
        t = test()
        t[0].cond = True
        chk = self.probe(name + "<") + [S(f"s_cmp_lg_u32 {s_w}, 0"), S(f"s_cbranch_scc1 {back}")] + t + [
            S(f"s_cbranch_scc0 {slow}"), LABEL(back), KEEP(*regs)] + self.probe(name + ">")
        self.slow.append((slow, back, lambda: [load().text().strip(), "s_waitcnt vmcnt(0)", test()[0].text().strip(), "s_nop 1"]
                          + [x.text().strip() for x in test()[1:]]))
        return issue, chk

    def poll_cnt(self, soff, shift, want):
        vp = VReg("poll")
        return self.poll(f"chk{soff}_{shift}", lambda: BLOAD("buffer_load_dword", vp, self.vzero, SW, soff, 0, "sc1"),
                         lambda: [RFL(s_t0, vp), S(f"s_bfe_u32 {s_t0}, {s_t0}, {hex((8 << 16) | shift)}"),
                                  S(f"s_cmp_eq_u32 {s_t0}, {want}")], [vp, self.vzero])

    def poll_f0(self):
        vp, va = VReg("poll"), VReg("polla")
        issue, chk = self.poll("f0", lambda: GLOAD("global_load_dword", vp, va, sDBG, 0, "sc1"),
                               lambda: [VCMP("v_cmp_ne_u32", "vcc", 0, vp), S("s_cmp_eq_u64 vcc, -1")], [vp, va])
        return self.field(va, [(0, 3, 2)]) + issue, chk

    def signal(self, soff, val):
        skip = self.label("nosig")
        t = VReg("sigv")
        a = BSTORE("buffer_atomic_add", t, self.vzero, SW, soff, counted=False)
        return [V("v_mov_b32", t, val), S(f"s_cmp_lg_u32 {s_w}, 0"), S(f"s_cbranch_scc1 {skip}"),
                S("s_mov_b64 exec, 1"), a, S("s_mov_b64 exec, -1"), LABEL(skip)]

    def rot(self, dst, reg, i, mask, mul, add=0, base=None):
        if not OPT.get("rot", 1):
            v = (i & mask) * mul + add
            return [S(f"s_add_u32 {dst}, {base}, {v}") if base else S(f"s_mov_b32 {dst}, {v}")]
        o = [S(f"s_add_u32 {dst}, {reg}, {i}"), S(f"s_and_b32 {dst}, {dst}, {mask}"), S(f"s_mul_i32 {dst}, {dst}, {mul}")]
        if add:
            o.append(S(f"s_add_u32 {dst}, {dst}, {add & 0xFFFFFFFF}"))
        if base:
            o.append(S(f"s_add_u32 {dst}, {dst}, {base}"))
        return o

    def dma_item(self, it, slot):
        kind, i = it
        tag = it
        o = [S(f"s_add_u32 m0, {s_w2048}, {slot * SLOT}")]
        if kind == "x":
            return [o + self.rot(s_so0, s_rot, i, 7, 128) + [DMA(self.vx0, SX, s_so0, 0, tag)],
                    [DMA(self.vx1, SX, s_so0, 1024, tag)]]
        if kind == "kv":
            return [o + self.rot(s_so0, s_rot, i, 7, 64 * 3072, 1024) + [DMA(self.vkv, SQ, s_so0, 0, tag)],
                    [DMA(self.vkv, SQ, s_so0, 1024, tag)]]
        if kind == "q":
            return [o + self.rot(s_so0, s_rot, 2 * i, 7, 64 * 3072) + [DMA(self.vkv, SQ, s_so0, 0, tag)],
                    [S(f"s_add_u32 m0, {s_w2048}, {slot * SLOT + 1024}")] + self.rot(s_so0, s_rot, 2 * i + 1, 7, 64 * 3072)
                    + [DMA(self.vkv, SQ, s_so0, 0, tag)]]
        if kind in ("g0", "g1"):
            return [o + self.rot(s_so0, s_rot, i, 7, 64 * 3584, 128 * int(kind[1])) + [DMA(self.vg, SG, s_so0, 0, tag)],
                    [DMA(self.vu, SU, s_so0, 1024, tag)]]
        if kind == "gh":
            return [o + self.rot(s_so0, s_roth, 2 * i, 7, 64 * 3584) + [DMA(self.vgh, SGH, s_so0, 0, tag)],
                    [DMA(self.vuh, SUH, s_so0, 1024, tag)]]
        if kind == "phi":
            a = srd_lo(SPHI)
            return [[S(f"s_lshl_b32 {s_so0}, {s_j}, 1"), S(f"s_add_u32 {s_so0}, {s_so0}, {s_c}"), S(f"s_lshl_b32 {s_so0}, {s_so0}, 10"),
                     S(f"s_mov_b32 s{a+2}, 16384"),
                     S(f"s_mov_b32 s{a+3}, 0x20000")] + o + [DMA(self.vl16, SPHI, s_so0, 0, tag)]]
        if kind == "T":
            vt, t1 = VReg("vT"), VReg("vT1")
            g0 = [V("v_lshrrev_b32", t1, 4, self.lane), S(f"s_lshl_b32 {s_so0}, {s_w}, 2"), V("v_add_u32", t1, s_so0, t1),
                  V("v_xor_b32", t1, t1, self.lane), V("v_and_b32", t1, 7, t1), V("v_and_b32", vt, 0x3f80, self.vl16),
                  V("v_lshl_add_u32", vt, t1, 4, vt),
                  S(f"s_lshl_b32 {s_so0}, {s_w}, 10"), S(f"s_add_u32 m0, {s_so0}, {slot * SLOT}"),
                  S(f"s_add_u32 {s_so0}, {s_so0}, {s_tld}"), DMA(vt, SW, s_so0, 0, tag, "sc1")]
            g1 = [S(f"s_lshr_b32 {s_so0}, {s_w}, 1"), V("v_xor_b32", t1, s_so0, self.lane), V("v_and_b32", t1, 7, t1),
                  V("v_lshlrev_b32", vt, 4, t1), S(f"s_lshl_b32 {s_so0}, {s_w}, 7"),
                  S(f"s_add_u32 m0, {s_so0}, {slot * SLOT + 8192}"), S(f"s_add_u32 {s_so0}, {s_so0}, {s_tld}"),
                  S(f"s_add_u32 {s_so0}, {s_so0}, 8192"), S("s_mov_b64 exec, 0xff"), DMA(vt, SW, s_so0, 0, tag, "sc1"),
                  S("s_mov_b64 exec, -1")]
            return [g0, g1]
        if i < 8:
            base, srd, rows, k, mask = s_R1, SD, 64 * (i >> 2), i & 3, 3
        elif i < 12:
            base, srd, rows, k, mask = s_RA, SD, 0, i - 8, 3
        elif i < 14:
            base, srd, rows, k, mask = s_R3h, SD, 0, i - 12, 1
        else:
            base, srd, rows, k, mask = s_R3, SO, 0, i - 14, 3
        return [o + self.rot(s_so0, s_rot2, k, mask, 16384, rows * 1024, base) + [DMA(self.vw2a, srd, s_so0, 0, tag)],
                [DMA(self.vw2b, srd, s_so0, 1024, tag)]]

    def warmup(self):
        vt = VReg("vt")
        pc = self.label("pc")

        def ld(base):
            i = GLOAD("global_load_dword", self.vdummy, vt, base)
            i.defs = []
            i.uses.append(self.vdummy.ref())
            return i
        o = [S(f"s_getpc_b64 {s_mask}"), LABEL(pc), S(f"s_bfe_u32 {s_t0}, s2, 0x20003"), S(f"s_lshl_b32 {s_t0}, {s_t0}, 3"),
             S(f"s_add_u32 {s_t0}, {s_t0}, {s_w}"), S(f"s_mul_i32 {s_t0}, {s_t0}, 640"),
             V("v_lshl_add_u32", vt, self.lane, 7, s_t0), V("v_min_u32", vt, f"L{self.typ}_end-{pc}-4", vt),
             S("s_mov_b64 exec, 31"), ld(s_mask), V("v_mov_b32", vt, 0)]
        o[-1] = S("s_mov_b64 exec, -1")
        return o

    def malltouch(self):
        A = self.typ == "A"
        vt, vr = VReg("vt"), VReg("vr")

        def ld(srd, off=0):
            i = BLOAD("buffer_load_dword", self.vdummy, vt, srd, s_t1, off)
            i.defs = []
            i.uses.append(self.vdummy.ref())
            return i
        o = [S(f"s_lshr_b32 {s_t0}, {s_rb}, 1"), S(f"s_lshl_b32 {s_t0}, {s_t0}, 4"), S(f"s_and_b32 {s_t1}, {s_rb}, 1"),
             S(f"s_add_u32 {s_t0}, {s_t0}, {s_t1}"), S(f"s_lshl_b32 {s_t0}, {s_t0}, 2"), V("v_and_b32", vr, 3, self.lane)]
        if A:
            o += [S(f"s_movk_i32 {s_t2}, 3584"), V("v_mul_u32_u24", vt, s_t2, vr), V("v_bfe_u32", vr, self.lane, 2, 1),
                  S(f"s_andn2_b32 {s_t2}, 1, {s_j}"), S(f"s_lshl_b32 {s_t2}, {s_t2}, 7"), V("v_mad_u32_u24", vt, vr, s_t2, vt),
                  S(f"s_mul_i32 {s_t1}, {s_t0}, 3584"), S("s_mov_b64 exec, 0xff"), ld(SG), ld(SU, 1024)]
        else:
            o += [S(f"s_movk_i32 {s_t2}, 3072"), V("v_mul_u32_u24", vt, s_t2, vr), S(f"s_mul_i32 {s_t1}, {s_t0}, 3072"),
                  S("s_mov_b64 exec, 15"), ld(SQ), S(f"s_movk_i32 {s_t2}, 3584"), V("v_mul_u32_u24", vt, s_t2, vr),
                  S(f"s_mul_i32 {s_t1}, {s_t0}, 3584"), ld(SG, 128), ld(SU, 1024 + 128)]
        o += [S("s_mov_b64 exec, 0x1ff"), S(f"s_mul_i32 {s_t0}, s2, 9"), V("v_add_u32", vr, s_t0, self.lane),
              V("v_lshlrev_b32", vt, 10, vr), S(f"s_lshl_b32 {s_t1}, {s_w}, 7"), ld(SD),
              V("v_subrev_u32", vt, 1792 * 1024, vt), ld(SO), S("s_mov_b64 exec, -1")]
        return o

    def w2touch(self, k, n):
        rows = 72 // n
        o = []
        if k == 0:
            self.vtw = VReg("vtw")
            a, d, q = srd_lo(SPHI), srd_lo(SD), srd_lo(SO)
            o += [S(f"s_lshr_b32 {s_side}, s2, 3"), S(f"s_mul_i32 {s_tw}, {s_side}, {72 * 1024}"),
                  S(f"s_lshl_b32 {s_t2}, {s_w}, 7"), S(f"s_add_u32 {s_tw}, {s_tw}, {s_t2}"),
                  S(f"s_sub_u32 {s_t2}, {s_tw}, {1792 * 1024}"), S(f"s_cmp_lt_u32 {s_side}, 25"),
                  S(f"s_cselect_b32 {s_tw}, {s_tw}, {s_t2}"), S(f"s_cselect_b64 s[{a}:{a+1}], s[{d}:{d+1}], s[{q}:{q+1}]"),
                  S(f"s_cselect_b32 s{a+2}, s{d+2}, s{q+2}"), V("v_lshlrev_b32", self.vtw, 10, self.lane)]
        i = BLOAD("buffer_load_dword", self.vdummy, self.vtw, SPHI, s_side)
        i.defs = []
        i.uses.append(self.vdummy.ref())
        o += [S(f"s_add_u32 {s_side}, s2, {k}"), S(f"s_and_b32 {s_side}, {s_side}, {n - 1}"),
              S(f"s_mul_i32 {s_side}, {s_side}, {rows * 1024}"), S(f"s_add_u32 {s_side}, {s_side}, {s_tw}"),
              S(f"s_mov_b64 exec, {hex((1 << rows) - 1)}"), i, S("s_mov_b64 exec, -1")]
        return o

    def gu_epi(self, acc, sbase, ch, tag):
        g = []
        for k in range(8):
            g.append(V("v_mul_f32", acc[k], s_nL, acc[k]))
        for k in range(8):
            g.append(V("v_exp_f32", acc[k], acc[k]))
        for k in range(8):
            g.append(V("v_add_f32", acc[k], 1.0, acc[k]))
        for k in range(8):
            g.append(V("v_rcp_f32", acc[k], acc[k]))
        for k in range(8):
            g.append(V("v_mul_f32", acc[8 + k], acc[k], acc[8 + k]))
        for k in range(4):
            g.append(V("v_cvt_pk_bf16_f32", acc[k], acc[8 + 2 * k], acc[9 + 2 * k]))
        g.append([S(f"s_add_u32 {s_side}, {sbase}, {ch * 8192}"),
                  BSTORE("buffer_store_dwordx4", acc[0:4], self.vl16, SW, s_side, 0, "sc1", tag)])
        return g

    def gu_pair(self, accs, sbase, ch, tag):
        a, b = self.gu_epi(accs[0], sbase, ch, tag), self.gu_epi(accs[1], sbase, ch + 1, tag)
        if OPT.get("stj", 0):
            return a[:-1] + b[:-1] + [a[-1], b[-1]]
        return a + b

    def phi_epi(self, acc, norm, P=None):
        g = []
        kb, P = acc, P or VReg("P", 16)
        for k in range(8):
            g.append(V("v_cvt_pk_bf16_f32", kb[k], acc[2 * k], acc[2 * k + 1]))
        g.append(MFMA(32, P, self.A0, kb[0:4], 0))
        g.append(MFMA(32, P, self.A1, kb[4:8], P))
        mx, mn = VReg("mx"), VReg("mn")
        g.append(V("v_max3_f32", mx, P[0], P[1], P[2]))
        g.append(V("v_min3_f32", mn, P[0], P[1], P[2]))
        for k in range(3, 15, 2):
            g.append(V("v_max3_f32", mx, mx, P[k], P[k + 1]))
            g.append(V("v_min3_f32", mn, mn, P[k], P[k + 1]))
        g.append(V("v_max_f32", mx, mx, P[15]))
        g.append(V("v_min_f32", mn, mn, P[15]))
        sp, sn = VReg("sp"), VReg("sn")
        for k in range(18):
            if k < 16:
                g.append(V("v_sub_f32", acc[k], P[k], mx))
                g.append(V("v_sub_f32", P[k], mn, P[k]))
            if 1 <= k < 17:
                g.append(V("v_exp_f32", acc[k - 1], acc[k - 1]))
                g.append(V("v_exp_f32", P[k - 1], P[k - 1]))
            if norm and k == 3:
                g.append(V("v_add_f32", sp, acc[0], acc[1]))
                g.append(V("v_add_f32", sn, P[0], P[1]))
            elif norm and k > 3:
                g.append(V("v_add_f32", sp, sp, acc[k - 2]))
                g.append(V("v_add_f32", sn, sn, P[k - 2]))
        if norm:
            g.append(V("v_rcp_f32", sp, sp))
            g.append(V("v_rcp_f32", sn, sn))
        for src, sc, o in ((acc, sp, 0), (P, sn, 8)):
            for k in range(8):
                if norm:
                    g.append(V("v_mul_f32", src[2 * k], sc, src[2 * k]))
                    g.append(V("v_mul_f32", src[2 * k + 1], sc, src[2 * k + 1]))
                g.append(V("v_cvt_pk_bf16_f32", acc[o + k], src[2 * k], src[2 * k + 1]))
        return g

    def build(self):
        A = self.typ == "A"
        O = OPT.get
        P = self.pro
        self.postbar = {}
        self.late = {}
        self.preprobe = {}
        self.prechk = {}
        self.lane = lane = VReg("lane", long=True)
        t = VReg("t")
        P += [V("v_lshrrev_b32", t, 6, self.v0), V("v_and_b32", lane, 63, self.v0), RFL(s_w, t)]
        if OPT["stamp"]:
            P += [V("v_mov_b32", self.vst, 0)]
        if O("trace", 0):
            self.vtr = [VReg("tr", long=True) for _ in range(4)]
            P += [V("v_mov_b32", x, 0) for x in self.vtr]
        self.vx0, self.vx1 = VReg("vx0"), VReg("vx1")
        q, p, q1 = VReg("q"), VReg("p"), VReg("q1")
        P += [V("v_lshrrev_b32", q, 3, lane), V("v_and_b32", p, 7, lane), V("v_lshrrev_b32", q1, 4, lane),
              V("v_xor_b32", t, p, q1), V("v_lshlrev_b32", t, 4, t), V("v_lshl_add_u32", self.vx0, q, 10, t),
              V("v_xor_b32", self.vx1, 64, self.vx0), V("v_add_u32", self.vx1, 7168, self.vx1),
              V("v_and_b32", q1, 1, q1)]
        self.vg, self.vu = VReg("vg", long=True), VReg("vu", long=True)
        t2 = VReg("t2")
        P += [S(f"s_movk_i32 {s_t0}, 3584"), V("v_lshlrev_b32", t, 1, q1), V("v_xor_b32", t, p, t),
              V("v_lshlrev_b32", t, 4, t), V("v_mad_u32_u24", self.vg, q, s_t0, t), V("v_xor_b32", self.vu, 64, self.vg)]
        self.vw2a, self.vw2b = VReg("vw2a", long=True), VReg("vw2b", long=True)
        self.vkv = VReg("vkv", long=True)
        P += [V("v_lshlrev_b32", t2, 2, q1), V("v_xor_b32", t2, p, t2), V("v_lshlrev_b32", t2, 4, t2),
              V("v_lshl_add_u32", self.vw2a, q, 10, t2), V("v_add_u32", self.vw2b, 7168, self.vw2a),
              S(f"s_movk_i32 {s_t1}, 3072"), V("v_mad_u32_u24", self.vkv, q, s_t1, t2)]
        P += [S(f"s_and_b32 {s_r}, {s_w}, 3"), S(f"s_lshr_b32 {s_c}, {s_w}, 2"), S(f"s_lshl_b32 {s_w2048}, {s_w}, 11")]
        if O("rot1", 1) == 1:
            P += [S(f"s_bfe_u32 {s_rot}, s2, 0x30003"), S(f"s_lshr_b32 {s_t0}, s2, 6"), S(f"s_lshl_b32 {s_t0}, {s_t0}, 1"),
                  S(f"s_add_u32 {s_rot}, {s_rot}, {s_t0}")]
        else:
            P += [S(f"s_bfe_u32 {s_rot}, s2, 0x30003"), S(f"s_lshr_b32 {s_t0}, s2, 6"),
                  S(f"s_add_u32 {s_rot}, {s_rot}, {s_t0}"), S(f"s_lshl_b32 {s_rot}, {s_rot}, 1")]
        P += [S(f"s_add_u32 {s_roth}, {s_rot}, {s_c}"), S(f"s_add_u32 {s_rot2}, {s_cb}, {s_rb2}")]
        P += [S(f"s_lshl_b32 {s_t0}, {s_rb}, 17"), S(f"s_lshl_b32 {s_t1}, {s_w}, 14"), S(f"s_add_u32 {s_so0}, {s_t0}, {s_t1}"),
              S(f"s_mul_i32 {s_t0}, {s_w}, {8 * 3072}"), S(f"s_lshl_b32 {s_t1}, {s_j}, 7"), S(f"s_add_u32 {s_so1}, {s_t0}, {s_t1}"),
              S(f"s_mul_i32 {s_t2}, {s_w}, {8 * 3584}")]
        if A:
            P += [S(f"s_lshr_b32 {s_t1}, {s_j}, 1"), S(f"s_mul_i32 {s_h}, {s_t1}, 384"), S(f"s_and_b32 {s_t1}, {s_j}, 1"),
                  S(f"s_lshl_b32 {s_u}, {s_t1}, 8"), S(f"s_add_u32 {s_u}, {s_u}, {s_h}"), S(f"s_add_u32 {s_u}, {s_u}, {s_t2}"),
                  S(f"s_lshl_b32 {s_t1}, {s_t1}, 6"), S(f"s_add_u32 {s_h}, {s_h}, {s_t1}"),
                  S(f"s_mul_i32 {s_t1}, {s_r}, {16 * 3584}"), S(f"s_add_u32 {s_h}, {s_h}, {s_t1}"), S(f"s_add_u32 {s_h}, {s_h}, 128")]
        else:
            P += [S(f"s_lshl_b32 {s_u}, {s_j}, 8"), S(f"s_add_u32 {s_u}, {s_u}, {s_t2}"), S(f"s_add_u32 {s_u}, {s_u}, 1536")]
        P += [S("s_waitcnt lgkmcnt(0)")]
        if OPT["stamp"]:
            P.append(Inst("v_writelane_b32", [self.vst.ref(), "s96", 0], [self.vst], [self.vst], "valu"))
            self.nstamp = 1
            P += self.stamp()
        qsetup = self.srd(SQ, sQKV, s_so1, 1572864)
        gsetup = self.srd(SG, sWG, s_u, 1835008) + self.srd(SU, sWU, s_u, 1835008, minus=1024)
        P += self.srd(SX, sX, s_so0, 2097152) + (qsetup if A else gsetup)

        if A:
            k1 = "kv"
            rest = [[("g0", i)] for i in range(8)] + [[("gh", i)] for i in range(4)]
        else:
            k1 = "g0"
            rest = [[("q", i)] for i in range(4)] + [[("g1", i)] for i in range(8)]
        steps = [[("x", i), (k1, i)] for i in range(8)] + rest
        chorder = [0, 1, 2, 3, 8, 9, 10, 11, 14, 15, 16, 17, 4, 5, 6, 7, 12, 13]
        if O("olast", 1):
            chorder = [0, 1, 2, 3, 8, 9, 10, 11, 4, 5, 6, 7, 12, 13, 14, 15, 16, 17]
        steps += [[("w2", i)] for i in chorder]
        tw = O("tw", 3)
        steps[tw].insert(0, ("phi", 0))
        items = [it for s in steps for it in s]
        k2, k3 = rest[0][0][0], rest[-1][0][0]
        tTd = O("tTd", 1)
        tT = O("tT", 21)
        if not A:
            steps[tT + tTd + 1].insert(0, ("T", 0))
        e1 = O("kve1", 12)
        release_at = e1 + O("kvl", 2)
        reserve_at = {7: 3} if A else {}
        self.lgbar = {e1, release_at, tw, tw + 1} if A else {tw, tw + 1, tT + 2, tT + 3}
        LA = O("la", 5)
        nst = len(steps)
        bars = {0, 1} | set(range(1, 8, 1 + O("b1", 0))) | set(range(7, 20, 1 + O("b2", 1))) | set(range(19, 30, 1 + O("b3", 0)))
        bars |= {20 + O("c4", 11), 20 + O("c2", 2), 20 + O("c3", 6), O("c1", 16), O("cf0", 11), 29}
        bars |= {e1, release_at, e1 + O("f1d", 4), O("s2", 18), 20 + O("s3a", 3)} if A else {
            tT, tT + tTd, tT + O("s4", 6), 20 + O("s3b", 3), O("s1", 12)}
        self.bars = bars
        need = {it: max([-1] + [b for b in bars if b <= tt - 1]) for tt, its in enumerate(steps) for it in its}
        due = {}
        st1 = [it for s in steps[:8] for it in s if it[0] != "phi"]
        st1.insert(4, ("phi", 0))
        for k, it in enumerate(st1):
            due[it] = -1 if k < 5 else (k - 5) // 3 if O("b1", 0) == 0 else (0, 0, 0, 0, 1, 1, 1, 2, 3, 3, 3, 3)[k - 5]
        for it in items:
            if it not in due and it[0] != "w2":
                due[it] = max(need[it] - LA, O("t2", 5))
        due[(k2, 0)] = O("h2", 4)
        due[(k3, 0)] = O("h3a", 9) if A else O("h3b", 8)
        if not A:
            due[("T", 0)] = tT
        w2q = [it for it in items if it[0] == "w2"]
        w2t = O("w2t", 13)
        free = list(range(OPT["nslot"]))
        slot_of = {}
        issue_at = {}
        xslots = []
        lag = O("nolg", 0)
        nfree = 0
        for tstep in range(-1, len(steps)):
            if tstep in bars:
                while nfree <= tstep - lag:
                    free += [slot_of[it] for it in steps[nfree]]
                    nfree += 1
            for _ in range(reserve_at.get(tstep, 0)):
                xslots.append(free.pop())
            if A and tstep == release_at:
                free += xslots
            lst = [it for it in due if due[it] == tstep]
            lst.sort(key=lambda it: need[it])
            while len(lst) > min(len(free), O("maxi", 3) if tstep >= 0 else 9):
                due[lst.pop()] = tstep + 1
            def fits(nf):
                k = nfree
                for x in range(tstep + 1, nst):
                    if x in bars:
                        while k <= x - lag:
                            nf += len(steps[k])
                            k += 1
                    nf -= reserve_at.get(x, 0) - (3 if A and x == release_at else 0) + sum(1 for it in due if due[it] == x)
                    if nf < 0 and O("la", 5) <= 3:
                        return False
                    if x >= 20:
                        break
                return True
            for _ in range(1 if tstep < O("w2two", 9) else 2):
                late = any(due[it] == tstep + 1 and tstep + 1 not in bars for it in due) and len(free) - len(lst) < 2
                if tstep >= w2t and w2q and len(free) > len(lst) and fits(len(free) - len(lst) - 1) and not late:
                    lst.append(w2q.pop(0))
            for it in lst:
                slot_of[it] = free.pop(0)
            issue_at[tstep] = lst
        assert not w2q
        self.steps, self.slot_of, self.issue_at = steps, slot_of, issue_at
        when = {it: tt for tt, l in issue_at.items() for it in l}
        for tt, its in enumerate(steps):
            assert all(when[it] < need[it] or when[it] < 0 for it in its), (tt, its)
        print(self.typ, "bars", sorted(bars), file=sys.stderr)
        print(self.typ, "lookahead", " ".join(str(min(need[it] - when[it] for it in its)) for tt, its in enumerate(steps)), file=sys.stderr)

        def emit(it):
            return [i for g in self.dma_item(it, slot_of[it]) for i in g]
        pre = issue_at[-1]
        P += emit(pre[0]) + emit(pre[1])
        P += gsetup if A else qsetup
        if O("pbar", 1):
            P.append(BAR())
        P += self.srd(SW, sWS, None, WS_SIZE)
        self.vl16 = VReg("vl16", long=True)
        self.vzero = VReg("vzero", long=True)
        P += [V("v_lshlrev_b32", self.vl16, 4, lane), V("v_mov_b32", self.vzero, 0)]
        if not A:
            z4, zo = VReg("z4", 4), VReg("zo")
            skip = self.label("nozero")
            P += [S(f"s_cmp_lg_u32 {s_rb}, 0"), S(f"s_cbranch_scc1 {skip}"),
                  S(f"s_mul_i32 {s_t0}, {s_j}, {ZBLK}"), S(f"s_add_u32 {s_t0}, {s_t0}, {WS_Z}")]
            for rep in range(2):
                if rep == 0:
                    P += [S(f"s_lshl_b32 {s_t1}, {s_w}, 10")]
                else:
                    P += [S(f"s_and_b32 {s_t1}, {s_w}, 1"), S(f"s_lshl_b32 {s_t1}, {s_t1}, 10"), S(f"s_add_u32 {s_t1}, {s_t1}, 8192")]
                P += [V("v_add_u32", zo, s_t1, self.vl16), V("v_mov_b32", z4[0], 0)]
                for h in range(4):
                    P += [V("v_subrev_u32", z4[1], h * THEAD + 2176, zo), VCMP("v_cmp_gt_u32", "vcc", 128, z4[1]),
                          V("v_cndmask_b32", z4[0], z4[0], 1.0, "vcc", suffix="")]
                P += [V("v_mov_b32", z4[k], z4[0]) for k in range(1, 4)]
                P += [BSTORE("buffer_store_dwordx4", z4, zo, SW, s_t0, 0, "sc1", counted=False)]
            P += [LABEL(skip)]
        for it in pre[2:4]:
            P += emit(it)
        self.vdummy = VReg("dummy", long=True)
        P.append(V("v_mov_b32", self.vdummy, 0))
        if O("warm", 1):
            P += self.warmup()
        P += [S(f"s_mov_b32 {s_L}, 0x3fb8aa3b"), S(f"s_mov_b32 {s_nL}, 0xbfb8aa3b")]
        P += [S(f"s_lshl_b32 {s_t0}, {s_cb}, 7")] + self.srd(SD, sWD, s_t0, 1835008) + self.srd(SO, sWO, s_t0, 524288)
        P += [S(f"s_lshl_b32 {s_t1}, {s_rb2}, 16"), S(f"s_add_u32 {s_t0}, {s_t0}, {s_t1}")] + self.srd(SOUT, sOUTP, s_t0, 2097152)
        for it in pre[4:]:
            P += emit(it)
        if O("mt", 0):
            P += self.malltouch()
        P += [S(f"s_lshl_b32 {s_R1}, {s_w}, 17"), S(f"s_add_u32 {s_R1}, {s_R1}, {768 * 1024}"),
              S(f"s_lshr_b32 {s_t0}, {s_w}, 1"), S(f"s_mul_i32 {s_t0}, {s_t0}, {192 * 1024}"), S(f"s_and_b32 {s_t1}, {s_w}, 1"),
              S(f"s_lshl_b32 {s_RA}, {s_t1}, 17"), S(f"s_add_u32 {s_RA}, {s_RA}, {s_t0}"),
              S(f"s_lshl_b32 {s_R3h}, {s_t1}, 15"), S(f"s_add_u32 {s_R3h}, {s_R3h}, {s_t0}"), S(f"s_add_u32 {s_R3h}, {s_R3h}, 65536"),
              S(f"s_lshl_b32 {s_R3}, {s_w}, 16")]
        P += [S(f"s_lshl_b32 {s_t0}, {s_rb}, 2"), S(f"s_add_u32 {s_t0}, {s_t0}, {s_r}"), S(f"s_mul_i32 {s_t0}, {s_t0}, 144"),
              S(f"s_add_u32 {s_t0}, {s_t0}, {s_j}"), S(f"s_lshl_b32 {s_t0}, {s_t0}, 10"),
              S(f"s_lshl_b32 {s_t1}, {s_c}, 13"), S(f"s_add_u32 {s_hst1}, {s_t0}, {s_t1}"),
              S(f"s_add_u32 {s_hst2}, {s_hst1}, {s_t1}"),
              S(f"s_lshl_b32 {s_t0}, {s_rb2}, 1"), S(f"s_add_u32 {s_t0}, {s_t0}, {s_c}"), S(f"s_mul_i32 {s_t0}, {s_t0}, 144"),
              S(f"s_lshl_b32 {s_t1}, {s_r}, 1"), S(f"s_add_u32 {s_t0}, {s_t0}, {s_t1}"), S(f"s_lshl_b32 {s_hld}, {s_t0}, 10")]

        def f2off(dst, rbreg):
            return [S(f"s_lshr_b32 {s_t0}, {rbreg}, 1"), S(f"s_mul_i32 {s_t0}, {s_t0}, {ZBLK}"),
                    S(f"s_and_b32 {s_t1}, {rbreg}, 1"), S(f"s_lshl_b32 {s_t1}, {s_t1}, 8"),
                    S(f"s_add_u32 {s_t0}, {s_t0}, {s_t1}"), S(f"s_add_u32 {dst}, {s_t0}, {WS_Z + 9472}")]
        P += f2off(s_f2sig, s_rb) + [S(f"s_lshr_b32 {s_t2}, {s_rb2}, 1")] + f2off(s_f2wait, s_t2)
        P += [S(f"s_mul_i32 {s_t0}, {s_j}, {ZBLK}"), S(f"s_add_u32 {s_t0}, {s_t0}, {WS_Z}"), S(f"s_add_u32 {s_f1}, {s_t0}, 9216")]
        if A:
            P += [S(f"s_mul_i32 {s_t1}, {s_r}, {THEAD}"), S(f"s_add_u32 {s_tat}, {s_t0}, {s_t1}"),
                  S(f"s_lshl_b32 {s_t1}, {s_c}, 6"), S(f"s_add_u32 {s_tat}, {s_tat}, {s_t1}")]
        else:
            P += [S(f"s_mov_b32 {s_tld}, {s_t0}")]
        bx = [VReg(f"bx{i}") for i in range(4)]
        P += [S(f"s_lshl_b32 {s_t0}, {s_r}, 12")] + self.field(bx[0], [(0, 5, 7)], init=s_t0)
        P += [V("v_bfe_u32", t, lane, 1, 3), V("v_lshrrev_b32", t2, 5, lane), V("v_xor_b32", t, t, t2),
              V("v_lshl_add_u32", bx[0], t, 4, bx[0])]
        P += [V("v_xor_b32", bx[i], 32 * i, bx[0]) for i in range(1, 4)]
        bgu = [VReg("bgu0"), VReg("bgu1")]
        gu_base = self.field(bgu[0], [(5, 1, 11), (4, 1, 10), (2, 2, 7), (0, 2, 3), (3, 2, 5)])
        gu_base += [S(f"s_lshl_b32 {s_t0}, {s_c}, 6"), V("v_xor_b32", bgu[0], s_t0, bgu[0]), V("v_xor_b32", bgu[1], 32, bgu[0])]
        bkv = VReg("bkv")
        kv_base = self.field(bkv, [(5, 1, 11), (2, 2, 7), (3, 1, 6), (4, 1, 5), (0, 2, 3)])
        kv_base += [S(f"s_lshl_b32 {s_t0}, {s_c}, 6"), V("v_xor_b32", bkv, s_t0, bkv)]
        P += kv_base if A else gu_base
        P += self.stamp()

        X = [VReg(f"X{k}", 4, long=True) for k in range(32)]
        M = self.main
        accs = {}
        bgh = VReg("bgh")
        bw2 = [VReg("bw20"), VReg("bw21")]
        Hf = {(ch, e): VReg(f"H{ch}_{e}", 4) for ch in range(18) for e in range(2)}
        accH = [VReg("accH0", 16), VReg("accH1", 16)]
        accO = [VReg("accO0", 16), VReg("accO1", 16)]
        for tstep, its in enumerate(steps):
            self.first[tstep] = len(M)
            kind, i = its[-1]
            sb = slot_of[its[-1]] * SLOT
            if kind in ("kv", "g0", "g1"):
                if i == 0:
                    accs[kind] = [VReg(kind + "a0", 16), VReg(kind + "a1", 16)]
                for ks in range(4):
                    xr = []
                    k = 4 * i + ks
                    if tstep < 8:
                        fix, imm = self.lds(bx[ks], slot_of[("x", i)] * SLOT)
                        xr = fix + [DSR("ds_read_b128", X[k], bx[ks], imm)]
                    for tt in range(2):
                        if kind == "kv":
                            f, rd = self.trfrag(bkv, sb + ks * 4096 + tt * 1024, 512)
                        else:
                            f, rd = self.trfrag(bgu[tt], sb + ks * 4096, 512)
                        a = accs[kind][tt]
                        M.append(((xr if tt == 0 else []) + rd, MFMA(32, a, f, X[k], a if k else 0)))
            elif kind in ("q", "gh"):
                if i == 0:
                    accs[kind] = VReg(kind + "a", 16)
                for ks in range(8):
                    k = 8 * i + ks
                    if kind == "q":
                        f, rd = self.trfrag(bkv, sb + (ks & 3) * 4096 + (ks >> 2) * 1024, 512)
                    else:
                        f, rd = self.trfrag(bgh, sb + ks * 2048, 256)
                    M.append((rd, MFMA(32, accs[kind], f, X[k], accs[kind] if k else 0)))
            else:
                for e in range(2):
                    for nt in range(2):
                        f, rd = self.trfrag(bw2[nt], sb + e * 2048, 1024)
                        a = (accH if i < 14 else accO)[nt]
                        fresh = e == 0 and i in (0, 14)
                        M.append((rd, MFMA(32, a, f, Hf[(i, e)], 0 if fresh else a)))
        self.first[len(steps)] = len(M)
        F = self.first
        P2 = 20

        def bar(tstep):
            return F[tstep + 1] - D

        def post(tstep, g):
            self.postbar.setdefault(tstep, []).extend(g)

        def chk(tstep, g):
            if O("nochk", 0):
                g = [x for x in g if not (x.kind == "salu" and x.op == "s_cbranch_scc0")]
            self.prechk.setdefault(tstep, []).extend(g)

        def sig(tstep, tags, soff, val):
            self.prebar.setdefault(tstep, []).extend(tags)
            self.preprobe[tstep] = self.probe(f"sig{tags[0]}@{tstep}<")
            post(tstep, self.signal(soff, val))

        def split(groups):
            o = []
            for g in groups:
                cur, pending = [], set()
                for x in (g if isinstance(g, list) else [g]):
                    cur.append(x)
                    if x.kind == "salu":
                        if not x.op.startswith("s_cmp"):
                            pending = {x.ops[0].split(",")[0]}
                    else:
                        pending -= x.suses
                        if not pending:
                            o.append(cur)
                            cur = []
                assert not cur
            return o

        if not A:
            tg = O("tg", 4)
            gx, gw, ga, gb, gs = VReg("gx", 8), VReg("gw", 8), VReg("ga"), VReg("gb"), VReg("gs")
            g = [[S(f"s_lshl_b32 {s_t0}, {s_rb}, 3"), S(f"s_add_u32 {s_t0}, {s_t0}, {s_j}"), S(f"s_lshl_b32 {s_t0}, {s_t0}, 3"),
                  S(f"s_add_u32 {s_t0}, {s_t0}, {s_w}"), S(f"s_lshl_b32 {s_ph}, {s_t0}, 3"), S(f"s_add_u32 {s_ph}, {s_ph}, {WS_G}"),
                  S(f"s_lshl_b32 {s_t0}, {s_t0}, 11")] + self.field(gb, [(0, 5, 4)]) + self.field(ga, [(5, 1, 10)], init=gb)
                 + [V("v_add_u32", ga, s_t0, ga)]]
            g += [GLOAD("global_load_dwordx4", gx[4 * k:4 * k + 4], ga, sX, 512 * k) for k in range(2)]
            g += [GLOAD("global_load_dwordx4", gw[4 * k:4 * k + 4], gb, sGW, 512 * k) for k in range(2)]
            self.place(g, F[tg - 2], F[tg - 2] + 4)
            g = [V("v_mov_b32", gs, 0)]
            g += [V("v_dot2_f32_bf16", gs, gx[k], gw[k], gs) for k in range(8)]
            for sfx in ("row_shr:1", "row_shr:2", "row_shr:4", "row_shr:8"):
                g.append(V("v_add_f32", gs, gs, gs, suffix=sfx + " row_mask:0xf bank_mask:0xf bound_ctrl:0"))
            g.append(V("v_add_f32", gs, gs, gs, suffix="row_bcast:15 row_mask:0xa bank_mask:0xf", rmw=True))
            gc = VReg("gc")
            g += [V("v_mul_f32", gs, s_nL, gs), V("v_exp_f32", gs, gs), V("v_add_f32", gs, 1.0, gs), V("v_rcp_f32", gs, gs),
                  self.field(gc, [(5, 1, 2)]),
                  [S("s_mov_b32 exec_lo, 0x80000000"), S("s_mov_b32 exec_hi, 0x80000000"),
                   BSTORE("buffer_store_dword", gs, gc, SW, s_ph, 0, "sc1", "gate"), S("s_mov_b64 exec, -1")]]
            self.place(g, F[tg], F[tg + 1] - 1)
        self.A0, self.A1 = VReg("A0", 4, long=True), VReg("A1", 4, long=True)
        wa, wf, wl = VReg("wa"), VReg("wf", 4), VReg("wl", 4)
        g = [[S(f"s_add_u32 {s_side}, {s_w2048}, {slot_of[('phi', 0)] * SLOT}")]
             + self.field(wa, [(0, 1, 9), (5, 1, 7), (2, 2, 5), (4, 1, 4), (1, 1, 3)], init=s_side),
             DSR("ds_read_b64_tr_b16", wf[0:2], wa, 0), DSR("ds_read_b64_tr_b16", wf[2:4], wa, 256)]
        self.place(split(g), F[tw] - 2, F[tw] + 2)
        g = []
        for k in range(4):
            g += [V("v_lshlrev_b32", wl[k], 16, wf[k]), V("v_and_b32", wf[k], 0xFFFF0000, wf[k]),
                  V("v_mul_f32", wl[k], s_L, wl[k]), V("v_mul_f32", wf[k], s_L, wf[k]),
                  V("v_cvt_pk_bf16_f32", wf[k], wl[k], wf[k])]
        tm = VReg("tm")
        g.append([V("v_and_b32", tm, 4, lane), VCMP("v_cmp_eq_u32", s_mask, 0, tm)])
        g += [V("v_cndmask_b32", self.A0[k], 0, wf[k], s_mask) for k in range(4)]
        g += [V("v_cndmask_b32", self.A1[k], wf[k], 0, s_mask) for k in range(4)]
        self.place(g, F[tw] + 4, F[tw + 2] - 1)

        def hload(ch):
            c0, mask = (ch & ~3, 3) if ch < 12 else (12, 1) if ch < 14 else (14, 3)
            return self.rot(s_side, s_rot2, ch - c0, mask, 8192, c0 * 8192, s_hld) + [
                BLOAD("buffer_load_dwordx4", Hf[(ch, 0)], self.vl16, SW, s_side, 0, "sc1"),
                BLOAD("buffer_load_dwordx4", Hf[(ch, 1)], self.vl16, SW, s_side, 1024, "sc1")]

        w2base = self.field(bw2[0], [(5, 1, 9), (2, 2, 7), (3, 1, 6), (4, 1, 5), (0, 2, 3)])
        w2base = [w2base + [S(f"s_lshl_b32 {s_side}, {s_r}, 12"), V("v_add_u32", bw2[0], s_side, bw2[0]),
                            V("v_xor_b32", bw2[1], 64, bw2[0])]]
        f0i, f0c = self.poll_f0()
        post(O("cf0", 11) - 3, f0i)
        chk(O("cf0", 11), f0c)
        assert O("cf0", 11) <= (e1 if A else O("s1", 12))
        ts2 = O("s2", 18)
        gue = F[16] + O("gue", 10)
        if A:
            self.place(split([gu_base]), F[7], F[7] + 4)
            th0 = min(when[it] for it in when if it[0] == "gh")
            assert all(when[it] < th0 for it in items if it[0] in ("x", "kv"))
            self.vgh, self.vuh = VReg("vgh"), VReg("vuh")
            th = VReg("th")
            self.place([[V("v_lshrrev_b32", th, 2, lane), S(f"s_movk_i32 {s_side}, 3584"),
                         V("v_mul_u32_u24", self.vgh, s_side, th)] + self.field(self.vgh, [(0, 2, 4)], init=self.vgh)
                        + [V("v_xor_b32", self.vuh, 32, self.vgh)]
                        + self.srd(SGH, sWG, s_h, 1835008) + self.srd(SUH, sWU, s_h, 1835008, minus=1024)],
                       bar(th0) - 1, bar(th0) - 1)
            g = self.field(bgh, [(4, 1, 10), (5, 1, 9), (2, 2, 6), (4, 1, 5), (0, 2, 3)])
            self.place(split([g + [S(f"s_lshl_b32 {s_side}, {s_c}, 5"), V("v_xor_b32", bgh, s_side, bgh)]]), F[15], F[15] + 4)
            PH0, PH1, VB = xslots[0] * SLOT, xslots[1] * SLOT, xslots[2] * SLOT
            kacc, vacc = accs["kv"]
            pk = self.phi_epi(kacc, True, vacc)
            va = VReg("va")
            vg_ = [[S(f"s_lshl_b32 {s_side}, {s_r}, 12"), S(f"s_add_u32 {s_side}, {s_side}, {VB}")]
                   + self.field(va, [(0, 5, 7), (3, 1, 6), (1, 1, 5), (2, 1, 4), (0, 1, 3)], init=s_side)]
            tv = VReg("tv")
            vg_.append([V("v_lshrrev_b32", tv, 5, lane), V("v_lshlrev_b32", tv, 3, tv), V("v_xor_b32", va, tv, va),
                        S(f"s_lshl_b32 {s_side}, {s_c}, 6"), V("v_xor_b32", va, s_side, va)])
            self.place(split(vg_), F[1], F[1] + 7)
            vg_ = []
            for qq in range(4):
                vg_ += [V("v_cvt_pk_bf16_f32", vacc[4 * qq], vacc[4 * qq], vacc[4 * qq + 1]),
                        V("v_cvt_pk_bf16_f32", vacc[4 * qq + 1], vacc[4 * qq + 2], vacc[4 * qq + 3]),
                        DSW("ds_write_b64", va, vacc[4 * qq:4 * qq + 2], 0)]
                if qq < 3:
                    vg_.append(V("v_xor_b32", va, 16 * (qq ^ (qq + 1)), va))
            pa = VReg("pa")
            pw = [[S(f"s_mov_b32 {s_side}, {(PH1 - 16384) & 0xffffffff}"), S(f"s_cmp_lt_u32 {s_r}, 2"),
                   S(f"s_cselect_b32 {s_side}, {PH0}, {s_side}"),
                   S(f"s_lshl_b32 {s_t2}, {s_r}, 13"), S(f"s_add_u32 {s_side}, {s_side}, {s_t2}")]
                  + self.field(pa, [(0, 5, 8), (3, 1, 7), (1, 1, 6), (0, 1, 5), (2, 1, 4)], init=s_side)]
            tp = VReg("tp")
            pw.append([V("v_lshrrev_b32", tp, 5, lane), V("v_lshlrev_b32", tp, 6, tp), V("v_xor_b32", pa, tp, pa),
                       S(f"s_lshl_b32 {s_side}, {s_c}, 7"), V("v_xor_b32", pa, s_side, pa)])
            self.place(split(pw), F[2], F[2] + 7)
            pw = []
            for qq in range(4):
                pw.append(DSW("ds_write_b128", pa, kacc[4 * qq:4 * qq + 4], 0))
                if qq < 3:
                    pw.append(V("v_xor_b32", pa, 16 * (qq ^ (qq + 1)), pa))
            if O("sg", 0) & 1:
                self.stag(pk[:8] + vg_ + pk[8:] + pw, 8, e1, F[8])
            else:
                self.place(pk[:8] + vg_ + pk[8:10], F[8] + 1, F[8] + 5)
                self.place(pk[10:] + pw, F[8] + 7, bar(e1) - 1)
            r1, r2, r3, r4 = VReg("rp1"), VReg("rp2"), VReg("rv1"), VReg("rv2")
            ta = VReg("ta")
            kv = [self.field(r1, [(2, 2, 8), (4, 2, 11), (4, 1, 7), (3, 1, 6), (2, 1, 5), (0, 1, 3)])
                  + [V("v_bfe_u32", ta, lane, 1, 1), V("v_lshlrev_b32", ta, 4, ta), V("v_xor_b32", r1, ta, r1),
                     S(f"s_lshl_b32 {s_side}, {s_r}, 6"), S(f"s_lshl_b32 {s_t2}, {s_c}, 5"),
                     S(f"s_add_u32 {s_side}, {s_side}, {s_t2}"), V("v_xor_b32", r1, s_side, r1)]]
            kv.append(self.field(r3, [(2, 2, 7), (4, 2, 10), (4, 1, 6), (3, 1, 5), (2, 1, 3)])
                      + [V("v_and_b32", ta, 3, lane), V("v_lshlrev_b32", ta, 3, ta), V("v_xor_b32", r3, ta, r3),
                         S(f"s_lshl_b32 {s_side}, {s_r}, 5"), V("v_xor_b32", r3, s_side, r3)])
            aa = VReg("aa")
            kv.append(self.field(aa, [(4, 2, 9), (0, 4, 2)]))
            self.place(split(kv), F[5], F[6] + 7)
            ones = VReg("ones", 4)
            D1, D2 = VReg("D1", 4), VReg("D2", 4)
            mk = bar(e1)
            for m in range(4):
                fp, fv = VReg("fp", 4), VReg("fv", 4)
                pb = (PH0 if m < 2 else PH1) + (m & 1) * 8192
                kv = []
                for reg, dst, addr in ((r1, fp[0:2], pb), (r2, fp[2:4], pb + 1024), (r3, fv[0:2], VB + m * 4096),
                                       (r4, fv[2:4], VB + m * 4096 + 512)):
                    fix, imm = self.lds(reg, addr)
                    kv += fix + [DSR("ds_read_b64_tr_b16", dst, reg, imm)]
                if m == 0:
                    kv = [V("v_xor_b32", r2, 16, r1), V("v_xor_b32", r4, 16, r3)] + kv
                if m == 1:
                    kv += [V("v_mov_b32", ones[k], 0x3F803F80) for k in range(4)]
                self.place(kv, mk + 2 * m, mk + 2 * m + 1)
                self.place([MFMA(16, D1, fv, fp, D1 if m else 0), MFMA(16, D2, ones, fp, D2 if m else 0)], mk + 2 * m + 3, mk + 2 * m + 4)
            assert mk + 7 < bar(release_at)
            kv = [BSTORE("buffer_atomic_add_f32", D1[k], aa, SW, s_tat, 128 * k, "", "kvat") for k in range(4)]
            kv.append([S("s_mov_b64 exec, 0xffff"), BSTORE("buffer_atomic_add_f32", D2[0], aa, SW, s_tat, 2048, "", "kvat"),
                       S("s_mov_b64 exec, -1")])
            self.place(kv, mk + O("ao", 12), mk + O("ao", 12) + O("asp", 2))
            assert mk + O("ao", 12) + O("asp", 2) < bar(e1 + O("f1d", 4))
            sig(e1 + O("f1d", 4), ["kvat"], s_f1, 1)
            gu = self.gu_pair(accs["g0"], s_hst2, 8, "S2")
            if O("sg", 0) & 2:
                self.stag(gu, 16, O("gus", 17), F[16])
                assert O("gus", 17) < O("s2", 18)
            else:
                self.place(gu, F[16] + 1, F[16] + O("gue", 10))
            assert F[16] + O("gue", 10) < bar(O("s2", 18))
            sig(O("s2", 18), ["S2"], s_f2sig, 1 << 8)
            self.place(self.gu_epi(accs["gh"], s_hst1, 12, "S3"), F[P2] + 1, F[P2] + O("ghe", 2))
            assert F[P2] + O("ghe", 2) < bar(P2 + O("s3a", 3))
            sig(P2 + O("s3a", 3), ["S3"], s_f2sig, 1 << 16)
        else:
            skip = self.label("nof0")
            tz, tz2 = VReg("tz"), VReg("tz2")
            post(0, [V("v_mov_b32", tz, 1), S(f"s_lshl_b32 {s_side}, {s_j}, 2"), V("v_mov_b32", tz2, s_side),
                     S(f"s_or_b32 {s_side}, {s_rb}, {s_w}"), S(f"s_cmp_lg_u32 {s_side}, 0"), S(f"s_cbranch_scc1 {skip}"),
                     GSTORE("global_store_dword", tz2, tz, sDBG, 0, "sc1", counted=False), LABEL(skip)])
            self.place(split([kv_base]), F[7], F[7] + 4)
            gu = self.gu_pair(accs["g0"], s_hst2, 0, "S1")
            if O("sg", 0) & 4:
                self.stag(gu, 8, O("g0s", 9), F[8])
                assert O("g0s", 9) < O("s1", 12)
            else:
                self.place(gu, F[8] + 1, F[8] + O("g0e", 27))
            assert F[8] + O("g0e", 27) < bar(O("s1", 12))
            sig(O("s1", 12), ["S1", "gate"], s_f2sig, 1)
            qacc = accs["q"]
            pq = self.phi_epi(qacc, False)
            for e in range(2):
                for k in range(4):
                    pq.append(SWAP32(qacc[8 * e + k], qacc[8 * e + 4 + k]))
            if O("sg", 0) & 8:
                self.stag(pq, 12 + (12 in bars and 11 not in bars), O("pqs", 15), F[12])
            else:
                self.place(pq, F[12] + 1, F[O("pqe", 17)] - 1)
            f1i, f1c = self.poll_cnt(s_f1, 0, 16)
            post(tT - O("pdT", 1), f1i)
            chk(tT, f1c)
            TB = slot_of[("T", 0)] * SLOT
            tva, tvb = VReg("tva"), VReg("tvb")
            og = [[V("v_and_b32", tva, 31, lane), V("v_min_u32", tva, 16, tva), V("v_and_b32", tvb, 27, lane),
                   VCMP("v_cmp_eq_u32", "vcc", 17, tvb), V("v_cndmask_b32", tva, tva, tvb, "vcc"),
                   S(f"s_mul_i32 {s_side}, {s_c}, 36"), V("v_add_u32", tva, s_side, tva)]]
            ta = [VReg("ta0"), VReg("ta1")]
            for hh in range(2):
                if hh:
                    og.append(V("v_add_u32", tva, 18, tva))
                og += [V("v_bfe_u32", tvb, tva, 1, 3), V("v_lshlrev_b32", ta[hh], 7, tva), V("v_lshl_add_u32", ta[hh], tvb, 4, ta[hh]),
                       V("v_and_b32", tvb, 32, lane), V("v_xor_b32", ta[hh], tvb, ta[hh]), V("v_add_u32", ta[hh], TB, ta[hh])]
            self.place(og, F[tT - 1], F[tT] + 3)
            og = []
            Traw, Os = {}, {}
            for hh in range(2):
                prev = 0
                for e in range(2):
                    Traw[hh, e] = VReg("Traw", 8)
                    for half in range(2):
                        x = 64 * e + 16 * half
                        if x != prev:
                            og.append(V("v_xor_b32", ta[hh], x ^ prev, ta[hh]))
                        prev = x
                        og.append(DSR("ds_read_b128", Traw[hh, e][4 * half:4 * half + 4], ta[hh], 0))
            m0 = bar(tT + tTd)
            self.place(og, m0, m0 + 2)
            og = []
            for hh in range(2):
                for e in range(2):
                    T = Traw[hh, e]
                    og += [V("v_cvt_pk_bf16_f32", T[k], T[2 * k], T[2 * k + 1]) for k in range(4)]
            for hh in range(2):
                for e in range(2):
                    Os[hh, e] = VReg("O", 16)
                    og.append(MFMA(32, Os[hh, e], Traw[hh, e][0:4], qacc[8 * e + 4 * hh:8 * e + 4 * hh + 4], 0))
            for hh in range(2):
                Op, On = Os[hh, 0], Os[hh, 1]
                og += [V("v_rcp_f32", Op[9], Op[9]), V("v_rcp_f32", On[9], On[9]),
                       V("v_mul_f32", Op[8], Op[9], Op[8]), V("v_fmac_f32", Op[8], On[9], On[8]),
                       V("v_add_f32", Op[8], 0x358637BD, Op[8]), V("v_rcp_f32", Op[8], Op[8]),
                       V("v_mul_f32", Op[9], Op[8], Op[9]), V("v_mul_f32", On[9], Op[8], On[9])]
                og += [V("v_mul_f32", Op[k], Op[9], Op[k]) for k in range(8)]
                og += [V("v_fmac_f32", Op[k], On[9], On[k]) for k in range(8)]
                og += [V("v_cvt_pk_bf16_f32", Op[k], Op[2 * k], Op[2 * k + 1]) for k in range(4)]
                og.append([S(f"s_add_u32 {s_side}, {s_hst2}, {(14 + hh) * 8192}"),
                           BSTORE("buffer_store_dwordx4", Op[0:4], self.vl16, SW, s_side, 0, "sc1", "S4")])
            oe = m0 + 4 + O("oe", 8)
            g1s = F[P2] + 1 if m0 >= F[P2] + 6 else max(oe + 1, F[P2] + 1)
            self.place(og[:16], m0 + 3, m0 + 4)
            self.place(og[16:20], m0 + 5, m0 + 5)
            self.place(og[20:], m0 + 7, oe)
            assert oe < bar(tT + O("s4", 6)) and m0 + 2 < bar(min(b for b in bars if b > tT + tTd))
            sig(tT + O("s4", 6), ["S4"], s_f2sig, 1 << 24)
            gu = self.gu_pair(accs["g1"], s_hst2, 4, "S3")
            self.place(gu, g1s, g1s + O("g1e", 7) - 1)
            assert g1s + O("g1e", 7) - 1 < bar(P2 + O("s3b", 3))
            sig(P2 + O("s3b", 3), ["S3"], s_f2sig, 1 << 16)
        if O("wt", 1):
            w0, n = O("wt0", 6), O("wtn", 4)
            for k in range(n):
                m = F[w0 + k * 8 // n] + O("wto", 5)
                self.place([self.w2touch(k, n)], m, m)
        self.place([KEEP(self.vdummy)], F[P2], F[P2])
        self.place(split(w2base), F[19], F[19] + 4)
        c2, c4, c3 = P2 + O("c2", 2), P2 + O("c4", 11), P2 + O("c3", 6)
        if O("olast", 1):
            c4, c3 = P2 + O("c4", 11), P2 + O("c3", 6)
        assert O("c1", 16) > O("s1", 12) and c2 > O("s2", 18) and c3 > P2 + max(O("s3a", 3), O("s3b", 3)) and c4 > tT + O("s4", 6)
        assert tT > e1 + O("f1d", 4) or A
        hg = O("hg", 3)
        pd = O("pd", 1)
        sets = [(0, 8, range(0, 4), O("c1", 16) - pd, O("c1", 16), O("hg1", 8)), (8, 8, range(8, 12), c2 - O("pd2", 1), c2, hg),
                (24, 8, range(14, 18), c4 - O("pd4", 2), c4, O("hg4", 2)), (16, 16, [4, 5, 6, 7, 12, 13], c3 - O("pd3", 1), c3, O("hg3", 3))]
        for shift, want, chs, t_issue, t_chk, gap in sets:
            pi, pc = self.poll_cnt(s_f2wait, shift, want)
            post(t_issue, pi)
            chk(t_chk, pc)
            for k, ch in enumerate(chs):
                m_ld = bar(t_chk) + gap * k
                assert m_ld < F[P2 + chorder.index(ch)] - 2
                self.place([hload(ch)], m_ld, m_ld)
        gv, ga2 = VReg("gv"), VReg("ga2")
        self.place([[S(f"s_lshl_b32 {s_side}, {s_rb2}, 1"), S(f"s_add_u32 {s_side}, {s_side}, {s_c}"),
                     S(f"s_lshl_b32 {s_side}, {s_side}, 7"), S(f"s_add_u32 {s_side}, {s_side}, {WS_G}")]
                    + self.field(ga2, [(0, 5, 2)]) + [BLOAD("buffer_load_dword", gv, ga2, SW, s_side, 0, "sc1")]],
                   F[19] + 1, F[19] + 1)
        og_ = VReg("omg")
        g = [V("v_sub_f32", og_, 1.0, gv)]
        if O("olast", 1):
            accE, accL, sE, sL, m0 = accH, accO, og_, gv, F[P2 + 15]
        else:
            accE, accL, sE, sL, m0 = accO, accH, gv, og_, F[P2 + 13]
        for nt in range(2):
            g += [V("v_mul_f32", accE[nt][k], sE, accE[nt][k]) for k in range(16)]
        self.place(g, m0, m0 + 7)

        lastbar = max(bars)
        busy = {slot_of[it] for st in steps[lastbar + 1 - lag:] for it in st}
        rs = [x for x in range(OPT["nslot"]) if x not in busy][:4]
        assert len(rs) == 4
        T = self.tail
        wa_ = [VReg("redw") for _ in range(4)]
        ra_, rb_, oa_ = VReg("redr"), VReg("redr2"), VReg("outa")
        tr = VReg("tr")
        tbl = sum(x << (8 * k) for k, x in enumerate(rs))
        setup = [[S(f"s_lshr_b32 {s_side}, {s_w}, 1"), S(f"s_lshl_b32 {s_side}, {s_side}, 3"), S(f"s_lshr_b32 {s_side}, {tbl}, {s_side}"),
                  S(f"s_and_b32 {s_side}, {s_side}, 15"), S(f"s_lshl_b32 {s_side}, {s_side}, 1"), S(f"s_and_b32 {s_t2}, {s_w}, 1"),
                  S(f"s_add_u32 {s_side}, {s_side}, {s_t2}"), S(f"s_lshl_b32 {s_side}, {s_side}, 13")]
                 + self.field(wa_[0], [(0, 5, 8), (0, 3, 4)], init=s_side)
                 + [V("v_lshrrev_b32", tr, 5, lane), V("v_lshlrev_b32", tr, 4, tr), V("v_xor_b32", wa_[0], tr, wa_[0])]
                 + [V("v_xor_b32", wa_[k], 32 * k, wa_[0]) for k in range(1, 4)]]
        setup += [self.field(ra_, [(4, 2, 8), (0, 4, 4)]) + [V("v_and_b32", tr, 48, lane), V("v_xor_b32", ra_, tr, ra_)],
                  [S(f"s_lshl_b32 {s_side}, {s_c}, 4"), S(f"s_lshr_b32 {s_side}, {tbl}, {s_side}"), S(f"s_bfe_u32 {s_t2}, {s_side}, 0x40008"),
                   S(f"s_and_b32 {s_side}, {s_side}, 15"), S(f"s_lshl_b32 {s_t1}, {s_r}, 11"),
                   S(f"s_lshl_b32 {s_t2}, {s_t2}, 14"), S(f"s_add_u32 {s_t2}, {s_t2}, {s_t1}"), V("v_add_u32", rb_, s_t2, ra_),
                   S(f"s_lshl_b32 {s_side}, {s_side}, 14"), S(f"s_add_u32 {s_side}, {s_side}, {s_t1}"), V("v_add_u32", ra_, s_side, ra_)],
                  [S(f"s_lshl_b32 {s_side}, {s_w}, 13")] + self.field(oa_, [(4, 2, 10), (0, 4, 3)], init=s_side)]
        rc_, rd_ = VReg("redr3"), VReg("redr4")
        setup += [V("v_xor_b32", rc_, 64, ra_), V("v_xor_b32", rd_, 64, rb_)]
        self.place(setup[:1], F[P2 + 9], F[P2 + 9])
        self.place(setup[1:], F[P2 + 10], F[P2 + 10] + 3)
        T.append("STAMP")
        for nt in range(2):
            for qq in range(4):
                T += [V("v_fmac_f32", accE[nt][4 * qq + k], sL, accL[nt][4 * qq + k]) for k in range(4)]
                T.append(DSW("ds_write_b128", wa_[qq], accE[nt][4 * qq:4 * qq + 4], 128 * nt))
        T += [WAITLGKM(), BAR()]
        parts = {}
        for i in range(2):
            for kq in range(4):
                parts[i, kq] = VReg("part", 4)
                T.append(DSR("ds_read_b128", parts[i, kq], ((ra_, rb_), (rc_, rd_))[i][kq >> 1], (kq & 1) * 8192 + i * 1024))
        for i in range(2):
            for k in range(4):
                T.append(V("v_add_f32", parts[i, 0][k], parts[i, 0][k], parts[i, 1][k]))
                T.append(V("v_add_f32", parts[i, 2][k], parts[i, 2][k], parts[i, 3][k]))
            for k in range(4):
                T.append(V("v_add_f32", parts[i, 0][k], parts[i, 0][k], parts[i, 2][k]))
            T += [V("v_cvt_pk_bf16_f32", parts[i, 0][0], parts[i, 0][0], parts[i, 0][1]),
                  V("v_cvt_pk_bf16_f32", parts[i, 0][1], parts[i, 0][2], parts[i, 0][3])]
            if i:
                T.append(S(f"s_movk_i32 {s_side}, 4096"))
            T.append(BSTORE("buffer_store_dwordx2", parts[i, 0][0:2], oa_, SOUT, s_side if i else 0, 0, ("", "nt", "sc1", "sc0 sc1")[O("ost", 2)]))
        if OPT["stamp"]:
            T += [WAITALL(), "STAMP"]
            sa = VReg("sa")
            T += [S(f"s_lshl_b32 {s_side}, s2, 3"), S(f"s_add_u32 {s_side}, {s_side}, {s_w}"), S(f"s_lshl_b32 {s_side}, {s_side}, 8"),
                  S(f"s_add_u32 {s_side}, {s_side}, {WS_STAMP}"), V("v_lshlrev_b32", sa, 2, lane),
                  BSTORE("buffer_store_dword", self.vst, sa, SW, s_side)]
            if O("trace", 0):
                T += [S(f"s_lshl_b32 {s_side}, s2, 3"), S(f"s_add_u32 {s_side}, {s_side}, {s_w}"), S(f"s_lshl_b32 {s_side}, {s_side}, 10"),
                      S(f"s_add_u32 {s_side}, {s_side}, {0xA00000}")]
                T += [BSTORE("buffer_store_dword", self.vtr[k], sa, SW, s_side, 256 * k) for k in range(4)]
            if "ea" in OPT:
                lp = self.label("echo")
                T += [RL(s_t0, self.vst, OPT["ea"]), RL(s_t1, self.vst, OPT["eb"]), RL(s_t2, self.vst, 42),
                      S(f"s_sub_u32 {s_t0}, {s_t1}, {s_t0}"), S(f"s_mul_i32 {s_t0}, {s_t0}, {OPT.get('em', 4)}"),
                      S(f"s_min_u32 {s_t0}, {s_t0}, 100000"), LABEL(lp), S(f"s_memrealtime {s_ts}"), S("s_waitcnt lgkmcnt(0)"),
                      S(f"s_sub_u32 s94, s94, {s_t2}"), S(f"s_cmp_lt_u32 s94, {s_t0}"), S(f"s_cbranch_scc1 {lp}")]
            if OPT.get("dbgt", 0):
                d1, d2 = VReg("d1"), VReg("d2")
                for k, (idx, inv) in enumerate([(0, 1), (0, 0), (3, 0), (11, 0), (23, 0), (31, 0), (41, 0), (42, 0)]):
                    T += [RL(s_side, self.vst, idx)]
                    if inv:
                        T += [S(f"s_not_b32 {s_side}, {s_side}")]
                    T += [V("v_mov_b32", d1, s_side), V("v_mov_b32", d2, 32 + 4 * k), S("s_mov_b64 exec, 1"),
                          GSTORE("global_atomic_umax", d2, d1, sDBG), S("s_mov_b64 exec, -1")]

        out = list(P)
        out += [WAITVM(*steps[0]), BAR()] + self.stamp_issue()
        if O("prio", 0):
            out.append(S("s_setprio 2"))
        if O("sp", 0):
            out.append(S("s_setprio 1"))
        for m in range(D):
            out += M[m][0]
        step_at = {F[tt + 1] - D: tt for tt in range(len(steps) - 1)}
        pend = []
        for m in range(len(M)):
            if m in step_at:
                tt = step_at[m]
                out.append(COMMENT(f"---- end of step {tt}"))
                if tt not in bars:
                    assert tt not in self.prebar and tt not in self.prechk, tt
                    out += self.stamp_collect()[1:] + self.stamp_issue()
                elif O("nolg", 0) and tt not in self.lgbar and tt != len(steps) - 2:
                    out += self.stamp_collect()[1:] + self.preprobe.get(tt, [])
                else:
                    out += [WAITLGKM()] + self.stamp_collect() + self.preprobe.get(tt, [])
                if tt in bars:
                    out += [WAITVM(*([it for it in need if need[it] == tt] + self.prebar.get(tt, [])))] + self.prechk.get(tt, [])
                    out += [BAR()] + ([S("s_setprio 3")] if O("prio", 0) else []) + self.stamp_issue()
                out += self.postbar.get(tt, [])
                assert not pend
                pend = [g for it in issue_at[tt] for g in self.dma_item(it, slot_of[it])]
            if m + D < len(M):
                out += M[m + D][0]
            out.append(M[m][1])
            if O("trace", 0):
                pair = ("s[96:97]", "s96") if m & 1 else ("s[12:13]", "s12")
                if m >= 2:
                    tv = self.vtr[(m - 2) >> 6]
                    out.append(Inst("v_writelane_b32", [tv.ref(), pair[1], f"{(m - 2) & 63}"], [tv], [tv], "valu"))
                out.append(Inst("s_memtime", [pair[0]], kind="smem"))
            if O("prio", 0):
                b0 = max([x for x in step_at if x <= m] + [-D if O("prio0", 1) else 0])
                b1 = min([x for x in step_at if x > m] + [len(M)])
                pr = lambda k: 3 - min(3, (k - b0) * 4 // (b1 - b0))
                nx = pr(m + 1)
                if nx != pr(m) and m + 1 != b1:
                    out.append(S(f"s_setprio {nx}"))
            if pend:
                out += pend.pop(0)
                nb = min(x for x in list(step_at) + [len(M)] if x > m)
                while len(pend) > nb - m - 1:
                    out += pend.pop(0)
            sd = [i for g in self.side.get(m, []) + self.late.get(m, []) for i in g]
            vc = sum(i.cost for i in sd if i.kind in ("valu", "trans") and getattr(i, "blk", None) is None)
            if O("sp", 0) >= 2 and vc >= O("spc", 3) and not any(getattr(i, "blk", None) for i in sd):
                sd = [S("s_setprio 0")] + sd + [S("s_setprio 1")]
            out += sd
        for x in T:
            if x == "STAMP":
                out += ([WAITLGKM()] + self.stamp_collect() if OPT["stamp"] else []) + self.stamp()
            else:
                out.append(x)
        out.append(S("s_endpgm"))
        return out

    def text(self):
        prog = self.build()
        if OPT.get("nost", 0):
            prog = [i for i in prog if not (i.kind == "vstore" and i.tag in ("S1", "S2", "S3", "S4", "kvat"))]
        if OPT.get("l2hit", 0):
            for i in prog:
                h = OPT["l2hit"]
                if (i.kind == "dma" and i.tag[0] != "w2" and h & 1) or (i.kind == "dma" and i.tag[0] == "w2" and h & 2) or (
                        i.kind == "vload" and i.op == "buffer_load_dwordx4" and h & 4):
                    i.ops[-1] = 0
        prog, peak = finish(prog, 256)
        lines = [i.text() for i in prog]
        for slow, back, fn in self.slow:
            loop = slow + "_l"
            lines += [f"{slow}:", f"    s_mov_b32 {s_spin}, {OPT['spin']}", f"{loop}:"]
            lines += ["    " + x for x in fn()]
            lines += [f"    s_cbranch_scc1 {back}", "    s_sleep %d" % OPT.get("sleep", 2), f"    s_sub_u32 {s_spin}, {s_spin}, 1",
                      f"    s_cmp_lg_u32 {s_spin}, 0", f"    s_cbranch_scc1 {loop}", f"    s_branch {back}"]
        lines.append(f"L{self.typ}_end:")
        n = {}
        for i in prog:
            n[i.kind] = n.get(i.kind, 0) + 1
        print(self.typ, "peak vgpr", peak, n, file=sys.stderr)
        F = self.first
        for tt in range(len(F) - 1):
            print(self.typ, tt, " ".join("%.0f" % sum(i.cost for g in self.side.get(m, []) for i in g) for m in range(F[tt], F[tt + 1])), file=sys.stderr)
        lines.insert(0, "; probes " + self.typ + " " + " ".join(getattr(self, "probes", [])))
        print(self.typ, "issue_at", {k: [f"{a}{b}@{self.slot_of[(a, b)]}" for a, b in v] for k, v in self.issue_at.items() if v},
              file=sys.stderr)
        return "\n".join(lines)


def main():
    ref = open(f"cdna_kernels/{NAME}.s.ref").read().splitlines()
    head = [l for l in ref if l.startswith(";") and "@launch" not in l]
    o = head + ["; @launch grid=(256,1,1) block=(512,1,1) lds=163840",
                '.amdgcn_target "amdgcn-amd-amdhsa--gfx950"', ".text", f".globl {NAME}_kernel", ".p2align 8",
                f".type {NAME}_kernel,@function", f"{NAME}_kernel:"]
    if OPT["stamp"]:
        o.append("    " + ("s_memrealtime" if OPT["stamp"] == 1 else "s_memtime") + " s[96:97]")
    o += ["    " + x for x in f"""s_cmp_ge_u32 s2, 256
s_cbranch_scc1 L_exit
s_load_dwordx16 s[4:19], s[0:1], 0
s_load_dwordx8 s[20:27], s[0:1], 64
s_and_b32 {s_t0}, s2, 7
s_lshr_b32 {s_t1}, s2, 3
s_and_b32 {s_rb}, {s_t0}, 1
s_lshl_b32 {s_rb}, {s_rb}, 3
s_and_b32 {s_t2}, {s_t1}, 7
s_add_u32 {s_rb}, {s_rb}, {s_t2}
s_lshr_b32 {s_cg}, {s_t0}, 1
s_lshl_b32 {s_cg}, {s_cg}, 2
s_lshr_b32 {s_t2}, {s_t1}, 3
s_add_u32 {s_cg}, {s_cg}, {s_t2}
s_lshr_b32 {s_j}, {s_cg}, 1
s_lshl_b32 {s_rb2}, {s_t0}, 2
s_and_b32 {s_t2}, {s_t1}, 3
s_add_u32 {s_rb2}, {s_rb2}, {s_t2}
s_lshr_b32 {s_cb}, {s_t1}, 2
s_bitcmp1_b32 {s_cg}, 0
s_cbranch_scc1 L_typeB""".splitlines()]
    o.append(Prog("A").text())
    o.append("L_exit:\n    s_endpgm")
    o.append(".p2align 6\nL_typeB:")
    o.append(Prog("B").text())
    o.append(f""".section .rodata,"a"
.p2align 6
.amdhsa_kernel {NAME}_kernel
  .amdhsa_next_free_vgpr 256
  .amdhsa_next_free_sgpr 102
  .amdhsa_accum_offset 256
  .amdhsa_group_segment_fixed_size 0
  .amdhsa_kernarg_size 96
  .amdhsa_user_sgpr_count 2
  .amdhsa_user_sgpr_kernarg_segment_ptr 1
  .amdhsa_system_sgpr_workgroup_id_x 1
.end_amdhsa_kernel""")
    open(sys.argv[1], "w").write("\n".join(o) + "\n")


main()
```
